```python
import torch

def _softmax(x, axis=-1):
    return torch.softmax(x, dim=axis)
def _gelu(x):
    return torch.nn.functional.gelu(x, approximate="tanh")
def _silu(x):
    return torch.nn.functional.silu(x)
def _sigmoid(x):
    return torch.sigmoid(x)
def _layernorm(x, axis=-1, eps=1e-5):
    m = x.mean(dim=axis, keepdim=True)
    v = x.var(dim=axis, keepdim=True, unbiased=False)
    return (x - m) / torch.sqrt(v + eps)
def _scatter_add(tgt, idx, src, axis=0):
    return tgt.clone().index_add_(axis, idx, src)
def _segment_sum(src, seg, n):
    out = torch.zeros((n,) + src.shape[1:], dtype=src.dtype)
    return out.index_add_(0, seg, src)
def _pad(x, pw):
    flat = tuple(v for pair in reversed(pw) for v in pair)
    return torch.nn.functional.pad(x, flat)

kernel_name = 'standalone__weight_only_int_quip__sampling'

def setup_inputs():

    _w = (lambda a: (lambda t: t.to(torch.bfloat16) if t.is_floating_point() else t)(torch.as_tensor(a)))
    B, S, D, F = 32, 8, 1024, 3584
    G = -1 if -1 > 0 else D
    D = (D // G) * G
    ng = D // G
    bits = 3 if 3 > 0 else 4
    qmax = 1 << bits
    qw = torch.randint(0, qmax, (D, F)).to(torch.int32)
    U, _ = (lambda *_a, **_k: torch.linalg.qr(*[torch.as_tensor(_x).float() for _x in _a], **_k))((lambda *s: torch.randn(*s, dtype=torch.bfloat16) * 0.05)(D, D))
    V, _ = (lambda *_a, **_k: torch.linalg.qr(*[torch.as_tensor(_x).float() for _x in _a], **_k))((lambda *s: torch.randn(*s, dtype=torch.bfloat16) * 0.05)(F, F))
    return {
        "x": _w((lambda *s: torch.randn(*s, dtype=torch.bfloat16) * 0.05)(B, S, D)),
        "qw": _w(qw),
        "scales": _w(torch.abs((lambda *s: torch.randn(*s, dtype=torch.bfloat16) * 0.05)(ng, F)) * 0.02 + 0.005),
        "zeros": _w(torch.full((ng, F), qmax / 2.0, dtype=float)),
        "U": _w(U.to(float)),
        "V": _w(V.to(float)),
    }

def reference(x, qw, scales, zeros, U, V):
    B, S, D = x.shape
    ng, F = scales.shape
    G = D // ng
    s = (lambda x, n, axis: torch.repeat_interleave(x, n, dim=axis))(scales, G, axis=0)
    z = (lambda x, n, axis: torch.repeat_interleave(x, n, dim=axis))(zeros, G, axis=0)
    wq = ((lambda x, dt: x.to(dt))(qw, x.dtype) - z) * s
    xr = torch.einsum("bsd,de->bse", x, U)
    h  = torch.einsum("bse,ef->bsf", xr, wq)
    y  = torch.einsum("bsf,fg->bsg", h, V)
    return y
```

```python
class Asm:
    def __init__(self):
        self.lines = []
        self.uid = 0
    def __call__(self, s):
        for l in s.strip("\n").split("\n"):
            self.lines.append("    " + l.strip())
    def label(self, name):
        self.lines.append(name + ":")
    def newlabel(self, p="L"):
        self.uid += 1
        return f"{p}_{self.uid}"
    def raw(self, s):
        self.lines.append(s)
    def nop(self, n):
        while n > 0:
            k = min(n, 16)
            self(f"s_nop {k-1}")
            n -= k
    def text(self):
        return "\n".join(self.lines) + "\n"

def R(kind, base, n=1):
    if n == 1:
        return f"{kind}{base}"
    return f"{kind}[{base}:{base+n-1}]"
def v(b, n=1): return R("v", b, n)
def a(b, n=1): return R("a", b, n)
def s(b, n=1): return R("s", b, n)

HEADER = """; Kernarg layout for this problem (72 bytes, ptrs only, base s[0:1]):
"""

def kernel_desc(name, vgpr=512, accum=256, sgpr=102):
    return f""".amdhsa_kernel {name}
  .amdhsa_next_free_vgpr {vgpr}
  .amdhsa_next_free_sgpr {sgpr}
  .amdhsa_accum_offset {accum}
  .amdhsa_group_segment_fixed_size 0
  .amdhsa_kernarg_size 72
  .amdhsa_user_sgpr_count 2
  .amdhsa_user_sgpr_kernarg_segment_ptr 1
  .amdhsa_system_sgpr_workgroup_id_x 1
.end_amdhsa_kernel
"""
```

```python
import sys
from asmlib import *

S_X, S_Q, S_S, S_Z, S_U, S_V, S_O, S_XR, S_H, S_ST = 28, 32, 36, 40, 44, 48, 52, 56, 60, 64
S_W4, S_MB, S_CB, S_EB, S_M32, S_T0, S_T1, S_T2, S_T3 = 72, 73, 74, 75, 76, 77, 78, 79, 80
XR_OFF = 0
H_OFF = 1 << 20

def srd(A, d, lo, hi, nbytes, add=0):
    if add:
        A(f"s_add_u32 s{d}, s{lo}, {add}")
        A(f"s_addc_u32 s{d+1}, s{hi}, 0")
    else:
        A(f"s_mov_b32 s{d}, s{lo}")
        A(f"s_mov_b32 s{d+1}, s{hi}")
    A(f"s_mov_b32 s{d+2}, {nbytes}")
    A(f"s_mov_b32 s{d+3}, 0x20000")

def prologue(A, endlabel, nwg):
    A(f"s_cmp_ge_u32 s2, {nwg}")
    A(f"s_cbranch_scc1 {endlabel}")
    A("s_load_dwordx16 s[8:23], s[0:1], 0")
    A("s_load_dwordx2 s[24:25], s[0:1], 64")
    A("v_lshrrev_b32 v1, 6, v0")
    A("v_and_b32 v0, 63, v0")
    A(f"v_readfirstlane_b32 s{S_W4}, v1")
    A(f"s_and_b32 s3, s2, 7")
    A(f"s_lshr_b32 s4, s2, 3")
    A(f"s_and_b32 s{S_MB}, s4, 3")
    A(f"s_lshr_b32 s4, s4, 2")
    A(f"s_and_b32 s5, s4, 3")
    A(f"s_lshr_b32 s4, s4, 2")
    A(f"s_and_b32 s6, s3, 1")
    A(f"s_lshr_b32 s3, s3, 1")
    A(f"s_mul_i32 s7, s6, 3")
    A(f"s_add_u32 s7, s7, s5")
    A(f"s_add_u32 s6, s6, 6")
    A(f"s_cmp_lt_u32 s5, 3")
    A(f"s_cselect_b32 s7, s7, s6")
    A(f"s_lshl_b32 s{S_EB}, s3, 3")
    A(f"s_add_u32 s{S_EB}, s{S_EB}, s7")
    A(f"s_lshl_b32 s{S_M32}, s{S_MB}, 1")
    A(f"s_add_u32 s{S_M32}, s{S_M32}, s4")
    A(f"s_lshl_b32 s4, s4, 3")
    A(f"s_add_u32 s7, s7, s4")
    A(f"s_mul_i32 s{S_CB}, s3, 14")
    A(f"s_add_u32 s{S_CB}, s{S_CB}, s7")
    A("v_and_b32 v1, 15, v0")
    A("v_lshrrev_b32 v2, 4, v0")
    A("v_lshlrev_b32 v3, 4, v0")
    A("s_waitcnt lgkmcnt(0)")
    srd(A, S_X, 8, 9, 256 * 1024 * 2)
    srd(A, S_Q, 10, 11, 1024 * 3584 * 4)
    srd(A, S_S, 12, 13, 3584 * 2)
    srd(A, S_Z, 14, 15, 3584 * 2)
    srd(A, S_U, 16, 17, 1024 * 1024 * 2)
    srd(A, S_V, 18, 19, 3584 * 3584 * 2)
    srd(A, S_O, 20, 21, 256 * 3584 * 2)
    srd(A, S_XR, 24, 25, 256 * 1024 * 2, XR_OFF)
    srd(A, S_H, 24, 25, 256 * 3584 * 2, H_OFF)

def pk(A, d, lo, hi):
    A(f"v_cvt_pk_bf16_f32 v{d}, v{lo}, v{hi}")

def g1(A):
    A(f"s_lshl_b32 s{S_T0}, s{S_M32}, 16")
    A(f"s_lshl_b32 s{S_T1}, s{S_W4}, 9")
    A(f"s_add_u32 s{S_T0}, s{S_T0}, s{S_T1}")
    A(f"v_lshlrev_b32 v4, 11, v1")
    A(f"v_lshl_add_u32 v4, v2, 4, v4")
    A(f"v_add_u32 v4, s{S_T0}, v4")
    A(f"v_lshrrev_b32 v5, 2, v0")
    A(f"v_lshlrev_b32 v5, 11, v5")
    A(f"v_and_b32 v6, 3, v0")
    A(f"v_lshl_add_u32 v5, v6, 4, v5")
    A(f"s_lshl_b32 s{S_T0}, s{S_W4}, 19")
    A(f"s_lshl_b32 s{S_T1}, s{S_EB}, 6")
    A(f"s_add_u32 s{S_T0}, s{S_T0}, s{S_T1}")
    A(f"v_add_u32 v5, s{S_T0}, v5")
    A(f"s_lshl_b32 s{S_T2}, s{S_W4}, 14")
    A(f"s_mov_b32 s{S_T0}, 0")
    A(f"s_mov_b32 s{S_T3}, 32768")
    for q in range(16):
        A(f"s_add_u32 m0, s{S_T2}, {q*1024}")
        A(f"s_mov_b32 s{S_T0}, {q*32768}")
        A(f"buffer_load_dwordx4 v5, s[{S_U}:{S_U+3}], s{S_T0} offen lds")
        if q % 2 == 1:
            ks = q // 2
            A(f"buffer_load_dwordx4 {a(8*ks,4)}, v4, s[{S_X}:{S_X+3}], 0 offen offset:{64*ks}")
            A(f"buffer_load_dwordx4 {a(8*ks+4,4)}, v4, s[{S_X}:{S_X+3}], s{S_T3} offen offset:{64*ks}")
    A(f"v_lshrrev_b32 v7, 2, v1")
    A(f"v_lshl_add_u32 v7, v2, 3, v7")
    A(f"v_lshlrev_b32 v7, 6, v7")
    A(f"v_lshl_add_u32 v7, v6, 4, v7")
    A(f"v_add_u32 v7, s{S_T2}, v7")
    for ks in range(8):
        A(f"s_waitcnt vmcnt({(7-ks)*4})")
        for i in range(2):
            for hf in range(2):
                A(f"ds_read_b64_tr_b16 {a(64+8*ks+4*i+2*hf,2)}, v7 offset:{ks*2048 + hf*256 + i*8}")
    for ks in range(8):
        A(f"s_waitcnt lgkmcnt({min(15,(7-ks)*4)})")
        for mt in range(2):
            for i in range(2):
                d = v(16 + 8*mt + 4*i, 4)
                c = "0" if ks == 0 else d
                A(f"v_mfma_f32_16x16x32_bf16 {d}, {a(64+8*ks+4*i,4)}, {a(8*ks+4*mt,4)}, {c}")
    A(f"s_lshl_b32 s{S_T0}, s{S_W4}, 12")
    A(f"s_add_u32 s{S_T0}, s{S_T0}, 65536")
    A(f"v_add_u32 v8, s{S_T0}, v3")
    A.nop(8)
    for t in range(4):
        A(f"ds_write_b128 v8, {v(16+4*t,4)} offset:{t*1024}")
    A("s_waitcnt lgkmcnt(0)")
    A("s_barrier")
    skip = A.newlabel("g1skip")
    A(f"s_cmp_ge_u32 s{S_W4}, 2")
    A(f"s_cbranch_scc1 {skip}")
    A(f"s_lshl_b32 s{S_T0}, s{S_W4}, 11")
    A(f"s_add_u32 s{S_T0}, s{S_T0}, 65536")
    A(f"v_add_u32 v8, s{S_T0}, v3")
    for w in range(4):
        for i in range(2):
            A(f"ds_read_b128 {v(32+8*w+4*i,4)}, v8 offset:{w*4096+i*1024}")
    A("s_waitcnt lgkmcnt(0)")
    for e in range(8):
        A(f"v_add_f32 v{32+e}, v{32+e}, v{40+e}")
        A(f"v_add_f32 v{48+e}, v{48+e}, v{56+e}")
    for e in range(8):
        A(f"v_add_f32 v{32+e}, v{32+e}, v{48+e}")
    for q in range(4):
        pk(A, 12 + q, 32 + 2*q, 33 + 2*q)
    A(f"s_lshl_b32 s{S_T0}, s{S_M32}, 1")
    A(f"s_add_u32 s{S_T0}, s{S_T0}, s{S_W4}")
    A(f"s_lshl_b32 s{S_T0}, s{S_T0}, 5")
    A(f"s_add_u32 s{S_T0}, s{S_T0}, s{S_EB}")
    A(f"s_lshl_b32 s{S_T0}, s{S_T0}, 10")
    A(f"buffer_store_dwordx4 v[12:15], v3, s[{S_XR}:{S_XR+3}], s{S_T0} offen")
    A.label(skip)

def reduce16(A, acc, lds_base, tmp):
    A(f"s_lshl_b32 s{S_T0}, s{S_W4}, 14")
    A(f"s_add_u32 s{S_T0}, s{S_T0}, {lds_base}")
    A(f"v_add_u32 v8, s{S_T0}, v3")
    A.nop(8)
    for t in range(16):
        A(f"ds_write_b128 v8, {v(acc+4*t,4)} offset:{t*1024}")
    A("s_waitcnt lgkmcnt(0)")
    A("s_barrier")
    A(f"s_lshl_b32 s{S_T0}, s{S_W4}, 12")
    A(f"s_add_u32 s{S_T0}, s{S_T0}, {lds_base}")
    A(f"v_add_u32 v8, s{S_T0}, v3")
    for w in range(4):
        for i in range(4):
            A(f"ds_read_b128 {v(tmp+16*w+4*i,4)}, v8 offset:{w*16384+i*1024}")
    A("s_waitcnt lgkmcnt(0)")
    for e in range(16):
        A(f"v_add_f32 v{tmp+e}, v{tmp+e}, v{tmp+16+e}")
        A(f"v_add_f32 v{tmp+32+e}, v{tmp+32+e}, v{tmp+48+e}")
    for e in range(16):
        A(f"v_add_f32 v{tmp+e}, v{tmp+e}, v{tmp+32+e}")

def g2(A):
    WQ = 128; RAW = 32
    A(f"s_lshl_b32 s{S_T0}, s{S_MB}, 17")
    A(f"s_lshl_b32 s{S_T1}, s{S_W4}, 13")
    A(f"s_add_u32 s{S_T0}, s{S_T0}, s{S_T1}")
    A(f"v_add_u32 v4, s{S_T0}, v3")
    A(f"s_lshl_b32 s{S_T0}, s{S_CB}, 7")
    A(f"v_lshlrev_b32 v5, 3, v1")
    A(f"buffer_load_dwordx2 v[10:11], v5, s[{S_S}:{S_S+3}], s{S_T0} offen")
    A(f"buffer_load_dwordx2 v[12:13], v5, s[{S_Z}:{S_Z+3}], s{S_T0} offen")
    A(f"s_mov_b32 s{S_T0}, {8*14336}")
    A(f"v_mul_lo_u32 v6, v2, s{S_T0}")
    A(f"v_lshl_add_u32 v6, v1, 4, v6")
    A(f"s_mul_i32 s{S_T0}, s{S_W4}, {256*14336}")
    A(f"s_lshl_b32 s{S_T1}, s{S_CB}, 8")
    A(f"s_add_u32 s{S_T0}, s{S_T0}, s{S_T1}")
    A(f"v_add_u32 v6, s{S_T0}, v6")
    def qload(ks):
        for j in range(8):
            A(f"s_mov_b32 s{S_T0}, {(32*ks+j)*14336}")
            A(f"buffer_load_dwordx4 {v(RAW+32*(ks%3)+4*j,4)}, v6, s[{S_Q}:{S_Q+3}], s{S_T0} offen")
    for ks in range(3): qload(ks)
    A("s_waitcnt vmcnt(24)")
    A("v_lshlrev_b32 v16, 16, v10"); A("v_and_b32 v17, 0xffff0000, v10")
    A("v_lshlrev_b32 v18, 16, v11"); A("v_and_b32 v19, 0xffff0000, v11")
    A("v_lshlrev_b32 v20, 16, v12"); A("v_and_b32 v21, 0xffff0000, v12")
    A("v_lshlrev_b32 v22, 16, v13"); A("v_and_b32 v23, 0xffff0000, v13")
    for ks in range(8):
        nleft = min(7 - ks, 2) * 8
        A(f"s_waitcnt vmcnt({nleft})")
        rb = RAW + 32 * (ks % 3)
        for q in range(4):
            for i in range(4):
                r0 = rb + 4*(2*q) + i; r1 = rb + 4*(2*q+1) + i
                A(f"v_cvt_f32_i32 v{r0}, v{r0}")
                A(f"v_cvt_f32_i32 v{r1}, v{r1}")
                pk(A, r0, r0, r1)
                A(f"v_and_b32 v{r1}, 0xffff0000, v{r0}")
                A(f"v_lshlrev_b32 v{r0}, 16, v{r0}")
                A(f"v_sub_f32 v{r0}, v{r0}, v{20+i}")
                A(f"v_sub_f32 v{r1}, v{r1}, v{20+i}")
                pk(A, r0, r0, r1)
                A(f"v_and_b32 v{r1}, 0xffff0000, v{r0}")
                A(f"v_lshlrev_b32 v{r0}, 16, v{r0}")
                A(f"v_mul_f32 v{r0}, v{r0}, v{16+i}")
                A(f"v_mul_f32 v{r1}, v{r1}, v{16+i}")
                pk(A, WQ + 16*ks + 4*i + q, r0, r1)
        if ks + 3 < 8: qload(ks + 3)
    for mt in range(4):
        for ks in range(8):
            if ks % 4 == 0: A(f"s_mov_b32 s{S_T0}, {mt*32768 + ks*1024}")
            A(f"buffer_load_dwordx4 {a(32*mt+4*ks,4)}, v4, s[{S_XR}:{S_XR+3}], s{S_T0} offen offset:{(ks%4)*1024}")
    ACC = 32
    for mt in range(4):
        for ks in range(8):
            A(f"s_waitcnt vmcnt({31 - (8*mt+ks)})")
            for i in range(4):
                d = v(ACC + 16*mt + 4*i, 4)
                c = "0" if ks == 0 else d
                A(f"v_mfma_f32_16x16x32_bf16 {d}, {v(WQ+16*ks+4*i,4)}, {a(32*mt+4*ks,4)}, {c}")
    reduce16(A, ACC, 0, 128)
    T = 128
    for f in range(2):
        for q in range(4):
            r = 2*f + (q >> 1); i = 2*(q & 1)
            pk(A, 16 + 4*f + q, T + 4*i + r, T + 4*(i+1) + r)
    A(f"s_lshl_b32 s{S_T0}, s{S_MB}, 2")
    A(f"s_add_u32 s{S_T0}, s{S_T0}, s{S_W4}")
    A(f"s_mul_i32 s{S_T0}, s{S_T0}, 56")
    A(f"s_add_u32 s{S_T0}, s{S_T0}, s{S_CB}")
    A(f"s_lshl_b32 s{S_T0}, s{S_T0}, 11")
    A(f"buffer_store_dwordx4 v[16:19], v3, s[{S_H}:{S_H+3}], s{S_T0} offen")
    A(f"buffer_store_dwordx4 v[20:23], v3, s[{S_H}:{S_H+3}], s{S_T0} offen offset:1024")

def g3(A):
    NS = 4
    P = 3
    ACC = 32; VF = 96
    A("v_lshrrev_b32 v4, 3, v0")
    A("v_bfe_u32 v5, v0, 4, 1")
    A("v_and_b32 v6, 7, v0")
    A("v_xor_b32 v6, v6, v5")
    A(f"s_mov_b32 s{S_T0}, 7168")
    A(f"v_mul_lo_u32 v4, v4, s{S_T0}")
    A("v_lshl_add_u32 v4, v6, 4, v4")
    A(f"s_mul_i32 s{S_T0}, s{S_W4}, {896*7168}")
    A(f"s_lshl_b32 s{S_T1}, s{S_CB}, 7")
    A(f"s_add_u32 s{S_T0}, s{S_T0}, s{S_T1}")
    A(f"v_add_u32 v4, s{S_T0}, v4")
    A(f"s_mul_i32 s{S_T0}, s{S_MB}, {4*56*2048}")
    A(f"s_mul_i32 s{S_T1}, s{S_W4}, {14*2048}")
    A(f"s_add_u32 s{S_T0}, s{S_T0}, s{S_T1}")
    A(f"v_add_u32 v5, s{S_T0}, v3")
    A(f"s_lshl_b32 s{S_T2}, s{S_W4}, 15")
    A("v_lshrrev_b32 v6, 2, v1")
    A("v_lshl_add_u32 v7, v2, 4, v6")
    A("v_lshlrev_b32 v7, 7, v7")
    A(f"v_add_u32 v7, s{S_T2}, v7")
    A("v_lshrrev_b32 v6, 1, v6")
    A("v_and_b32 v9, 3, v0")
    A("v_lshlrev_b32 v9, 1, v9")
    A("v_xor_b32 v10, v9, v6")
    A("v_lshl_add_u32 v10, v10, 4, v7")
    A("v_or_b32 v9, 1, v9")
    A("v_xor_b32 v11, v9, v6")
    A("v_lshl_add_u32 v11, v11, 4, v7")
    def issue(kb):
        for q in range(8):
            A(f"s_add_u32 m0, s{S_T2}, {(kb%NS)*8192 + q*1024}")
            A(f"s_mov_b32 s{S_T0}, {(64*kb+8*q)*7168}")
            A(f"buffer_load_dwordx4 v4, s[{S_V}:{S_V+3}], s{S_T0} offen lds")
        for mt in range(4):
            A(f"s_mov_b32 s{S_T0}, {mt*56*2048 + kb*2048}")
            for f in range(2):
                A(f"buffer_load_dwordx4 {a(32*(kb%4)+8*mt+4*f,4)}, v5, s[{S_H}:{S_H+3}], s{S_T0} offen offset:{f*1024}")
    for kb in range(P): issue(kb)
    for kb in range(14):
        nleft = min(13 - kb, P - 1) * 16
        A(f"s_waitcnt vmcnt({nleft})")
        vb = VF + 32 * (kb % 2)
        for f in range(2):
            for i in range(4):
                for hf in range(2):
                    A(f"ds_read_b64_tr_b16 {v(vb+16*f+4*i+2*hf,2)}, v{10+(i>>1)} offset:{(kb%NS)*8192 + f*1024 + hf*512 + (i&1)*8}")
        if kb + P < 14: issue(kb + P)
        for f in range(2):
            A(f"s_waitcnt lgkmcnt({8*(1-f)})")
            for mt in range(4):
                for i in range(4):
                    d = v(ACC + 16*mt + 4*i, 4)
                    c = "0" if (kb == 0 and f == 0) else d
                    A(f"v_mfma_f32_16x16x32_bf16 {d}, {v(vb+16*f+4*i,4)}, {a(32*(kb%4)+8*mt+4*f,4)}, {c}")
    A("s_barrier")
    reduce16(A, ACC, 0, 128)
    T = 128
    for i in range(4):
        pk(A, 16 + 2*i, T + 4*i, T + 4*i + 1)
        pk(A, 17 + 2*i, T + 4*i + 2, T + 4*i + 3)
    A(f"s_mov_b32 s{S_T0}, 7168")
    A(f"v_mul_lo_u32 v4, v1, s{S_T0}")
    A("v_lshl_add_u32 v4, v2, 5, v4")
    A(f"s_lshl_b32 s{S_T0}, s{S_MB}, 2")
    A(f"s_add_u32 s{S_T0}, s{S_T0}, s{S_W4}")
    A(f"s_mul_i32 s{S_T0}, s{S_T0}, {16*7168}")
    A(f"s_lshl_b32 s{S_T1}, s{S_CB}, 7")
    A(f"s_add_u32 s{S_T0}, s{S_T0}, s{S_T1}")
    A(f"buffer_store_dwordx4 v[16:19], v4, s[{S_O}:{S_O+3}], s{S_T0} offen")
    A(f"buffer_store_dwordx4 v[20:23], v4, s[{S_O}:{S_O+3}], s{S_T0} offen offset:16")

def main(nempty=0):
    out = HEADER
    ks = [("g1_kernel", g1, 256, 81920), ("g2_kernel", g2, 224, 65536), ("g3_kernel", g3, 224, 131072)]
    for n, f, g, l in ks:
        out += f"; @launch kernel={n} grid=({g},1,1) block=(256,1,1) lds={l}\n"
    for e in range(nempty):
        out += f"; @launch kernel=nop_kernel grid=(256,1,1) block=(256,1,1) lds=0\n"
    out += '.amdgcn_target "amdgcn-amd-amdhsa--gfx950"\n.text\n'
    A = Asm()
    for n, f, g, l in ks:
        A.raw(f".globl {n}\n.p2align 8\n.type {n},@function\n{n}:")
        prologue(A, n + "_end", g)
        f(A)
        A.label(n + "_end")
        A("s_endpgm")
    if nempty:
        A.raw(f".globl nop_kernel\n.p2align 8\n.type nop_kernel,@function\nnop_kernel:")
        A("s_endpgm")
    out += A.text()
    out += '.section .rodata,"a"\n'
    for n, f, g, l in ks:
        out += ".p2align 6\n" + kernel_desc(n)
    if nempty:
        out += ".p2align 6\n" + kernel_desc("nop_kernel", 8, 8, 16)
    return out

if __name__ == "__main__":
    nempty = int(sys.argv[2]) if len(sys.argv) > 2 else 0
    open(sys.argv[1], "w").write(main(nempty))
```

```python
import sys, json
from collections import deque
from asmlib import *
NAME = "standalone__weight_only_int_quip__sampling_kernel"

S_X, S_Q, S_S, S_Z, S_U, S_V, S_O, S_W, S_D, S_ST = 28, 32, 36, 40, 44, 48, 52, 56, 60, 64
S_W4, S_MB, S_I7, S_CB, S_TOK, S_DIR, S_QK, S_XK, S_VB, S_VWRAP, S_HB, S_RING, S_OFF, S_T0, S_T1, S_T2, S_T3 = \
    68, 69, 70, 71, 72, 74, 75, 76, 77, 78, 79, 80, 81, 82, 83, 84, 85
S_MASK, S_OFF2 = 26, 27
S_STB = 86
S_MU, S_ET, S_UK, S_XBASE, S_UBASE = 3, 4, 5, 6, 7
XR_OFF, H_OFF, XF_OFF, HF_OFF = 0, 1 << 20, 3 << 20, (3 << 20) + 4096
V_L8, V_L16, V_P = 0, 1, 2
V_VD, V_TR, V_AO = 4, 8, 12
V_QO, V_SC, V_ZE = 16, 24, 28
RAW, WQ, ACC, HR = 32, 128, 32, 96
G_UD, G_XA, G_ACC, G_RED, G_C, G_G, G_T = 144, 148, 224, 160, 152, 153, 154
RING_SZ, SCR = 28672, 114688
SPIN = 30000

class Cfg:
    stamps = False
    D = 12
    D3 = 32
    ntw = ""
    ntx = ""
    orderA = None
    orderB = None
    vstart = (0, 6, 7, 13)
    nvA = 6
    dqpump = 13
    skip = ""
    hld = "sc1"

def sreg(k): return S_STB + 2*k if k < 8 else 8 + 2*(k - 8)
class Prog:
    def __init__(self, A, cls):
        self.A = A; self.cls = cls
        self.nvm = 0; self.done = 0; self.idx = {}
        self.nds = 0; self.ddone = 0; self.didx = {}
        self.flags = set(); self.Q = deque(); self.D = Cfg.D; self.slow = []; self.crit = False
    def __call__(self, s): self.A(s)
    def vm(self, text, tag=None, slow=False):
        sk = False
        if "V" in Cfg.skip and S4(S_V) in text: sk = True
        if "H" in Cfg.skip and S4(S_W) in text and "load_dwordx4 v" in text: sk = True
        if "Q" in Cfg.skip and S4(S_Q) in text: sk = True
        if not sk: self.A(text)
        if tag is not None: self.idx[tag] = self.nvm
        self.slow.append(slow)
        self.nvm += 1
    def wait_idx(self, i):
        if i < self.done: return
        n = min(self.nvm - 1 - i, 63)
        self.A(f"s_waitcnt vmcnt({n})")
        self.done = self.nvm - n
    def ds(self, text, tag=None):
        self.A(text)
        if tag is not None: self.didx[tag] = self.nds
        self.nds += 1
    def dwait_idx(self, i):
        if i < self.ddone: return
        n = min(self.nds - 1 - i, 15)
        self.A(f"s_waitcnt lgkmcnt({n})")
        self.ddone = self.nds - n
    def dall(self):
        self.dwait_idx(self.nds - 1)
    def step(self, crit=False):
        if not self.Q: return None
        it = self.Q[0]
        if any(p not in self.flags for p in it.get("pre", ())): return None
        if crit:
            w = self.nvm - self.D if it["kind"] == "ld" else self.idx[it["waits"]] if "waits" in it else -1
            if any(self.slow[self.done:w + 1]): return None
        self.Q.popleft()
        if it["kind"] == "ld" and self.nvm - self.D >= 0:
            self.wait_idx(self.nvm - self.D)
        it["emit"]()
        return it["kind"]
    def pump(self, n=1):
        while n > 0:
            k = self.step(self.crit)
            if k is None: return
            n -= 1
    def issue(self, tag, tab=None):
        tab = self.idx if tab is None else tab
        while tag not in tab:
            k = self.step()
            assert k is not None, f"deadlock waiting {tag}; head={self.Q[0] if self.Q else None} flags={sorted(self.flags)}"
    def need(self, tag, fill=True):
        self.issue(tag)
        while fill and self.idx[tag] >= self.done and self.Q:
            it = self.Q[0]
            w = self.nvm - self.D if it["kind"] == "ld" else self.idx[it["waits"]] if "waits" in it else -1
            if w > self.idx[tag]: break
            if self.step() is None: break
        self.wait_idx(self.idx[tag])
    def dneed(self, tag):
        self.issue(tag, self.didx); self.dwait_idx(self.didx[tag])
    def until(self, flag):
        while flag not in self.flags:
            k = self.step()
            assert k is not None, f"deadlock until {flag}; head={self.Q[0] if self.Q else None}"
    def stamp(self, k):
        if Cfg.stamps: self.A(f"s_memrealtime s[{sreg(k)}:{sreg(k)+1}]")

def srd(A, d, lo, hi, nbytes, add=0):
    if add:
        A(f"s_add_u32 s{d}, s{lo}, {add}")
        A(f"s_addc_u32 s{d+1}, s{hi}, 0")
    else:
        A(f"s_mov_b64 s[{d}:{d+1}], s[{lo}:{hi}]")
    A(f"s_mov_b32 s{d+2}, {nbytes}")
    A(f"s_mov_b32 s{d+3}, 0x20000")
def S4(d): return f"s[{d}:{d+3}]"
def pk(A, d, lo, hi): A(f"v_cvt_pk_bf16_f32 v{d}, v{lo}, v{hi}")

def stamp_flush(A, n=16):
    if not Cfg.stamps: return
    A("s_waitcnt vmcnt(0)")
    A(f"s_memrealtime s[{S_STB+14}:{S_STB+15}]")
    A("s_waitcnt lgkmcnt(0)")
    srd(A, S_ST, 24, 25, 1 << 20, 128 << 20)
    A(f"s_lshl_b32 s{S_T0}, s2, 2")
    A(f"s_add_u32 s{S_T0}, s{S_T0}, s{S_W4}")
    A(f"s_lshl_b32 s{S_T0}, s{S_T0}, 8")
    A("v_mov_b32 v4, 0")
    A("s_mov_b64 exec, 1")
    for k in range(n):
        A(f"v_mov_b32 v6, s{sreg(k)}")
        A(f"v_mov_b32 v7, s{sreg(k)+1}")
        A(f"buffer_store_dwordx2 v[6:7], v4, {S4(S_ST)}, s{S_T0} offen offset:{k*8}")
        A("s_nop 1")

def prologue(A):
    A("s_cmp_ge_u32 s2, 256")
    A("s_cbranch_scc1 kend")
    A("s_load_dwordx16 s[8:23], s[0:1], 0")
    A("s_load_dwordx2 s[24:25], s[0:1], 64")
    if Cfg.stamps:
        A(f"s_memrealtime s[{S_STB}:{S_STB+1}]")
        for k in range(1, 8): A(f"s_mov_b64 s[{S_STB+2*k}:{S_STB+2*k+1}], 0")
    A(f"s_memrealtime s[{S_TOK}:{S_TOK+1}]")
    A(f"s_getpc_b64 s[{S_ST}:{S_ST+1}]")
    A.label("pcbase")
    A(f"s_mov_b32 s{S_ST+2}, kend-pcbase")
    A(f"s_mov_b32 s{S_ST+3}, 0x20000")
    A("s_lshr_b32 s4, s2, 3")
    A("s_mul_i32 s3, s4, CODE_LINES*128")
    A("v_lshlrev_b32 v254, 7, v0")
    A("v_cmp_gt_u32 vcc, CODE_LINES, v0")
    A("s_and_saveexec_b64 s[6:7], vcc")
    A("s_cbranch_execz pfskip")
    A(f"buffer_load_dword v255, v254, {S4(S_ST)}, s3 offen")
    A.label("pfskip")
    A("s_mov_b64 exec, -1")
    A("v_lshrrev_b32 v1, 6, v0")
    A("v_and_b32 v0, 63, v0")
    A(f"v_readfirstlane_b32 s{S_W4}, v1")
    A("s_and_b32 s3, s2, 7")
    A(f"s_and_b32 s{S_MB}, s4, 3")
    A(f"s_lshr_b32 s{S_I7}, s4, 2")
    A(f"s_mul_i32 s{S_CB}, s3, 7")
    A(f"s_add_u32 s{S_CB}, s{S_CB}, s{S_I7}")
    A(f"s_mov_b32 s{S_MASK}, 0xffff0000")
    A(f"s_bitcmp1_b32 s{S_MB}, 0")
    A(f"s_cselect_b32 s{S_DIR}, -1, 1")
    A(f"s_cselect_b32 s{S_VWRAP}, 13, 0")
    A(f"s_cselect_b32 s{S_QK}, 7, 0")
    A(f"s_add_u32 s{S_QK}, s{S_QK}, s{S_I7}")
    A(f"s_and_b32 s{S_QK}, s{S_QK}, 7")
    A(f"s_mov_b32 s{S_XK}, s{S_QK}")
    vs = Cfg.vstart
    A(f"s_lshl_b32 s{S_T0}, s{S_MB}, 3")
    A(f"s_lshr_b32 s{S_T0}, {vs[0] | vs[1] << 8 | vs[2] << 16 | vs[3] << 24}, s{S_T0}")
    A(f"s_and_b32 s{S_T0}, s{S_T0}, 255")
    A(f"s_lshl1_add_u32 s{S_VB}, s{S_I7}, s{S_T0}")
    A(f"s_sub_u32 s{S_T0}, s{S_VB}, 14")
    A(f"s_cmp_ge_u32 s{S_VB}, 14")
    A(f"s_cselect_b32 s{S_VB}, s{S_T0}, s{S_VB}")
    A(f"s_mov_b32 s{S_HB}, s{S_VB}")
    A(f"s_mul_i32 s{S_RING}, s{S_W4}, {RING_SZ}")
    A(f"s_lshl1_add_u32 s5, s{S_I7}, s{S_MB}")
    A(f"s_sub_u32 s5, s5, 2")
    A(f"s_lshr_b32 s6, s5, 3")
    A(f"s_lshl1_add_u32 s{S_ET}, s3, s6")
    A(f"s_and_b32 s{S_MU}, s5, 7")
    c, g, t = G_C, G_G, G_T
    A(f"v_and_b32 v{c}, 15, v0")
    A(f"v_lshrrev_b32 v{g}, 4, v0")
    A(f"v_lshlrev_b32 v{V_L16}, 4, v0")
    A(f"v_lshrrev_b32 v{t}, 3, v0")
    A(f"v_and_b32 v{t+1}, 6, v{t}")
    A(f"v_and_b32 v{t+2}, 7, v0")
    A(f"v_xor_b32 v{t+1}, v{t+1}, v{t+2}")
    A(f"v_lshlrev_b32 v{t+1}, 4, v{t+1}")
    A(f"v_lshl_add_u32 v{G_UD}, v{t}, 11, v{t+1}")
    for q in range(1, 4): A(f"v_add_u32 v{G_UD+q}, {q*(8*2048-1024)}, v{G_UD}")
    A(f"v_and_b32 v{t}, 3, v{t}")
    A(f"v_lshrrev_b32 v{t+2}, 5, v0")
    A(f"v_lshl_add_u32 v{t}, v{t+2}, 4, v{t}")
    A(f"v_mul_u32_u24 v{t}, 7168, v{t}")
    A(f"v_add_u32 v{t}, v{t}, v{t+1}")
    A(f"s_mul_i32 s{S_T0}, s{S_W4}, {896*7168}")
    A(f"s_lshl_b32 s{S_T1}, s{S_CB}, 7")
    A(f"s_add_u32 s{S_T0}, s{S_T0}, s{S_T1}")
    A(f"v_add_u32 v{V_VD}, s{S_T0}, v{t}")
    for q in range(1, 4): A(f"v_add_u32 v{V_VD+q}, {(32*(q&1)+4*(q>>1))*7168 - q*1024}, v{V_VD}")
    A(f"v_lshrrev_b32 v{t}, 2, v0")
    A(f"v_and_b32 v{t+1}, 6, v{t}")
    A(f"v_bfe_u32 v{t+2}, v0, 1, 1")
    A(f"v_or_b32 v{t+1}, v{t+1}, v{t+2}")
    A(f"v_lshlrev_b32 v{t+1}, 4, v{t+1}")
    A(f"v_lshl_add_u32 v{t+1}, v{t}, 7, v{t+1}")
    A(f"v_and_b32 v{t+2}, 1, v0")
    A(f"v_lshl_add_u32 v{V_TR}, v{t+2}, 3, v{t+1}")
    for i in range(1, 4): A(f"v_xor_b32 v{V_TR+i}, {32*i}, v{V_TR}")
    A(f"v_mul_u32_u24 v{t}, {4*14336}, v{g}")
    A(f"v_lshl_add_u32 v{t}, v{c}, 4, v{t}")
    A(f"s_mul_i32 s{S_T0}, s{S_W4}, {256*14336}")
    A(f"s_lshl_b32 s{S_T1}, s{S_CB}, 8")
    A(f"s_add_u32 s{S_T0}, s{S_T0}, s{S_T1}")
    A(f"v_add_u32 v{V_QO}, s{S_T0}, v{t}")
    for j in range(1, 8): A(f"v_add_u32 v{V_QO+j}, {(16*(j>>2)+(j&3))*14336}, v{V_QO}")
    A(f"v_lshlrev_b32 v{t}, 3, v{c}")
    A(f"v_lshlrev_b32 v{V_L8}, 3, v0")
    A("s_waitcnt lgkmcnt(0)")
    srd(A, S_Q, 10, 11, 1024 * 3584 * 4)
    srd(A, S_X, 8, 9, 256 * 1024 * 2)
    srd(A, S_U, 16, 17, 1024 * 1024 * 2)
    srd(A, S_S, 12, 13, 3584 * 2)
    srd(A, S_Z, 14, 15, 3584 * 2)
    srd(A, S_V, 18, 19, 3584 * 3584 * 2)
    srd(A, S_O, 20, 21, 256 * 3584 * 2)
    srd(A, S_W, 24, 25, 4 << 20)
    srd(A, S_D, 22, 23, 256)
    if Cfg.stamps:
        A(f"s_memrealtime s[{S_STB+2}:{S_STB+3}]")
        for k in range(8, 16): A(f"s_mov_b64 s[{sreg(k)}:{sreg(k)+1}], 0")
    A(f"s_or_b32 s{S_T0}, s2, s{S_W4}")
    A(f"s_cmp_lg_u32 s{S_T0}, 0")
    A("s_cbranch_scc1 notok")
    A(f"v_mov_b32 v{V_P}, s{S_TOK}")
    A(f"v_mov_b32 v{V_P+1}, s{S_TOK+1}")
    A("s_mov_b64 exec, 1")
    A(f"buffer_store_dwordx2 v[{V_P}:{V_P+1}], off, {S4(S_D)}, 0 sc1")
    A("s_mov_b64 exec, -1")
    A.label("notok")
    A(f"s_cmp_eq_u32 s{S_I7}, 7")
    A("s_cbranch_scc1 cls_S")
    A(f"s_cmp_lt_u32 s{S_MB}, 2")
    A("s_cbranch_scc1 cls_A")
    A(f"s_cmp_eq_u32 s{S_I7}, 6")
    A("s_cbranch_scc1 cls_A")

def q_g1(P):
    A = P.A
    items = []
    def xld(b, rg):
        def e():
            if rg == 0:
                A(f"s_lshr_b32 s{S_T0}, s{S_UK}, 1")
                A(f"s_add_u32 s{S_T0}, s{S_T0}, {b}")
                A(f"s_and_b32 s{S_T0}, s{S_T0}, 3")
                A(f"s_lshl_b32 s{S_T0}, s{S_T0}, 7")
                A(f"s_add_u32 s{S_OFF2}, s{S_T0}, s{S_XBASE}")
                A(f"s_add_u32 m0, s{S_T2}, {b*4096}")
                A("s_nop 0")
            P.vm(f"buffer_load_dwordx4 v{G_UD+rg}, {S4(S_X)}, s{S_OFF2} offen offset:{rg*1024} {Cfg.ntx} lds", ("x", b) if rg == 3 else None)
        return dict(kind="ld", emit=e)
    def uld(j, q):
        def e():
            if q == 0:
                if j >= 4: P.dwait_idx(P.didx[("ut", j - 4)])
                A(f"s_add_u32 s{S_T0}, s{S_UK}, {2*(j>>1)}")
                A(f"s_and_b32 s{S_T0}, s{S_T0}, 7")
                if j & 1: A(f"s_xor_b32 s{S_T0}, s{S_T0}, 1")
                A(f"s_lshl_b32 s{S_T0}, s{S_T0}, 16")
                A(f"s_add_u32 s{S_OFF}, s{S_T0}, s{S_UBASE}")
                A(f"s_add_u32 m0, s{S_T2}, {16384 + (j%4)*4096}")
                A("s_nop 0")
            P.vm(f"buffer_load_dwordx4 v{G_UD+q}, {S4(S_U)}, s{S_OFF} offen offset:{q*1024} {Cfg.ntx} lds", ("u", j) if q == 3 else None)
        return dict(kind="ld", emit=e, pre=([("uread", j - 4)] if j >= 4 else []))
    order = [("u", 0), ("x", 0), ("x", 1), ("u", 1), ("u", 2), ("u", 3), ("x", 2), ("u", 4), ("u", 5), ("x", 3), ("u", 6), ("u", 7)]
    for k, j in order:
        for q in range(4): items.append(xld(j, q) if k == "x" else uld(j, q))
    return items

def q_sz(P):
    A = P.A
    def e1():
        A(f"s_lshl_b32 s{S_T0}, s{S_CB}, 7")
        P.vm(f"buffer_load_dwordx2 v[{V_SC}:{V_SC+1}], v{G_T}, {S4(S_S)}, s{S_T0} offen")
        P.vm(f"buffer_load_dwordx2 v[{V_ZE}:{V_ZE+1}], v{G_T}, {S4(S_Z)}, s{S_T0} offen", "sz")
    return [dict(kind="ld", emit=e1)]

def q_tok(P):
    def e(): P.vm(f"buffer_load_dwordx2 v[{V_P}:{V_P+1}], off, {S4(S_D)}, 0 sc1", "tok")
    return [dict(kind="ld", emit=e)]

def q_tokchk(P):
    A = P.A
    def e():
        P.wait_idx(P.idx["tok"])
        l = A.newlabel("tokl"); o = A.newlabel("toko")
        A(f"s_mov_b32 s{S_T3}, {SPIN}")
        A.label(l)
        A(f"v_readfirstlane_b32 s{S_TOK}, v{V_P}")
        A(f"v_readfirstlane_b32 s{S_TOK+1}, v{V_P+1}")
        A(f"s_cmp_lg_u64 s[{S_TOK}:{S_TOK+1}], 0")
        A(f"s_cbranch_scc1 {o}")
        A(f"s_sub_u32 s{S_T3}, s{S_T3}, 1")
        A(f"s_cbranch_scc1 {o}")
        A(f"buffer_load_dwordx2 v[{V_P}:{V_P+1}], off, {S4(S_D)}, 0 sc1")
        A("s_waitcnt vmcnt(0)")
        A(f"s_branch {l}")
        A.label(o)
        P.flags.add("tok")
    return [dict(kind="act", emit=e, waits="tok")]

def q_qw(P, slots):
    A = P.A
    items = []
    for s_ in slots:
        for j in range(8):
            def e(s_=s_, j=j):
                if j == 0:
                    if s_ > 0:
                        A(f"s_add_u32 s{S_QK}, s{S_QK}, s{S_DIR}")
                        A(f"s_and_b32 s{S_QK}, s{S_QK}, 7")
                    A(f"s_mul_i32 s{S_OFF}, s{S_QK}, {32*14336}")
                P.vm(f"buffer_load_dwordx4 {v(RAW+32*(s_%3)+4*j,4)}, v{V_QO+j}, {S4(S_Q)}, s{S_OFF} offen {Cfg.ntw}", ("q", s_) if j == 7 else None, "ring" not in P.flags)
            items.append(dict(kind="ld", emit=e, pre=([("dq", s_ - 3)] if s_ >= 3 else [])))
    return items

def home(j):
    if j < 8: return ("a", 128 + 16*j)
    if j < 16: return ("a", 16*(j - 8))
    if j < 20: return ("v", 192 + 16*(j - 16))
    return home(j - 20)
def home_pre(j):
    if j < 8: return []
    if j < 20: return ["g2mma"]
    return [("g3", j - 20)]

def q_vdma(P, j):
    A = P.A
    items = []
    for q in range(4):
        def e(q=q):
            if q == 0:
                if j >= 7: P.dwait_idx(P.didx[("vm", j - 7)])
                if j % 2 == 0:
                    if j > 0:
                        A(f"s_add_u32 s{S_VB}, s{S_VB}, s{S_DIR}")
                        A(f"s_cmp_ge_u32 s{S_VB}, 14")
                        A(f"s_cselect_b32 s{S_VB}, s{S_VWRAP}, s{S_VB}")
                    A(f"s_mul_i32 s{S_OFF2}, s{S_VB}, {64*7168}")
                else:
                    A(f"s_add_u32 s{S_OFF2}, s{S_OFF2}, {8*7168}")
                A(f"s_add_u32 m0, s{S_RING}, {(j%7)*4096}")
                A("s_nop 0")
            P.vm(f"buffer_load_dwordx4 v{V_VD+q}, {S4(S_V)}, s{S_OFF2} offen offset:{q*1024} {Cfg.ntw} lds", ("v", j) if q == 3 else None, True)
        items.append(dict(kind="ld", emit=e, pre=["ring"] + ([("vmoved", j - 7)] if j >= 7 else [])))
    return items

def q_vmove(P, j):
    A = P.A
    k, b = home(j)
    items = []
    for half in range(2):
        def e(half=half):
            P.wait_idx(P.idx[("v", j)])
            for i in (2*half, 2*half + 1):
                for hf in range(2):
                    P.ds(f"ds_read_b64_tr_b16 {R(k, b+4*i+2*hf, 2)}, v{V_TR+i} offset:{(j%7)*4096 + hf*2048}", ("vm", j))
            if half == 1: P.flags.add(("vmoved", j))
        items.append(dict(kind="act", emit=e, pre=home_pre(j), waits=("v", j)))
    return items

def q_poll(P, name, nl, off, gstride):
    A = P.A
    mask = (1 << nl) - 1
    def setup():
        A(f"s_lshl2_add_u32 s{S_T1}, s{S_MB}, s{S_W4}")
        A(f"s_mul_i32 s{S_T1}, s{S_T1}, {gstride}")
        A(f"s_add_u32 s{S_T1}, s{S_T1}, {off}")
        A(f"s_mov_b32 exec_lo, {mask & 0xffffffff}")
        A(f"s_mov_b32 exec_hi, {mask >> 32}")
    def e():
        setup()
        P.vm(f"buffer_load_dwordx2 v[{V_P}:{V_P+1}], v{V_L8}, {S4(S_W)}, s{S_T1} offen sc1", name + "poll")
        A("s_mov_b64 exec, -1")
    def chk():
        P.wait_idx(P.idx[name + "poll"])
        l = A.newlabel("pl"); o = A.newlabel("po")
        setup()
        A(f"s_mov_b32 s{S_T3}, {SPIN}")
        A.label(l)
        A(f"v_cmp_ne_u64 vcc, s[{S_TOK}:{S_TOK+1}], v[{V_P}:{V_P+1}]")
        A(f"s_cbranch_vccz {o}")
        A(f"s_sub_u32 s{S_T3}, s{S_T3}, 1")
        A(f"s_cbranch_scc1 {o}")
        A(f"buffer_load_dwordx2 v[{V_P}:{V_P+1}], v{V_L8}, {S4(S_W)}, s{S_T1} offen sc1")
        A("s_waitcnt vmcnt(0)")
        A(f"s_branch {l}")
        A.label(o)
        A("s_mov_b64 exec, -1")
        P.flags.add(name + "ok")
        P.stamp(4 if name == "x" else 6)
    return dict(kind="ld", emit=e), dict(kind="act", emit=chk, waits=name + "poll")

def ao_setup(P, base, per_mt, per_w):
    A = P.A
    for t in range(4):
        A(f"s_add_u32 s{S_T0}, s{S_W4}, {t}")
        A(f"s_and_b32 s{S_T0}, s{S_T0}, 3")
        A(f"s_lshl2_add_u32 s{S_T0}, s{S_MB}, s{S_T0}")
        A(f"s_mul_i32 s{S_T0}, s{S_T0}, {per_mt}")
        A(f"s_mul_i32 s{S_T1}, s{S_W4}, {per_w}")
        A(f"s_add_u32 s{S_T0}, s{S_T0}, s{S_T1}")
        if base: A(f"s_add_u32 s{S_T0}, s{S_T0}, {base}")
        A(f"v_add_u32 v{V_AO+t}, s{S_T0}, v{V_L16}")

def q_xr(P):
    A = P.A
    items = []
    for s_ in range(8):
        for t in range(4):
            def e(s_=s_, t=t):
                if t == 0:
                    if s_ > 0:
                        A(f"s_add_u32 s{S_XK}, s{S_XK}, s{S_DIR}")
                        A(f"s_and_b32 s{S_XK}, s{S_XK}, 7")
                    A(f"s_lshl_b32 s{S_OFF}, s{S_XK}, 10")
                P.vm(f"buffer_load_dwordx4 {a(16*s_+4*t,4)}, v{V_AO+t}, {S4(S_W)}, s{S_OFF} offen {Cfg.hld}", ("xr", s_) if t == 3 else None)
            items.append(dict(kind="ld", emit=e, pre=["xok"]))
    return items

def q_h(P, j):
    A = P.A
    items = []
    for t in range(4):
        def e(t=t):
            if t == 0 and j % 2 == 0:
                if j > 0:
                    A(f"s_add_u32 s{S_HB}, s{S_HB}, s{S_DIR}")
                    A(f"s_cmp_ge_u32 s{S_HB}, 14")
                    A(f"s_cselect_b32 s{S_HB}, s{S_VWRAP}, s{S_HB}")
                A(f"s_lshl_b32 s{S_OFF}, s{S_HB}, 11")
            P.vm(f"buffer_load_dwordx4 {v(HR+16*(j%6)+4*t,4)}, v{V_AO+t}, {S4(S_W)}, s{S_OFF} offen offset:{(j&1)*1024} {Cfg.hld}", ("h", j) if t == 3 else None)
        items.append(dict(kind="ld", emit=e, pre=["hok"] + ([("g3", j - 6)] if j >= 6 else [])))
    return items

def g1_setup(P):
    A = P.A
    c, g, t = G_C, G_G, G_T + 1
    A(f"s_and_b32 s{S_T0}, s{S_ET}, 1")
    A(f"s_lshl2_add_u32 s{S_UK}, s{S_T0}, s{S_MU}")
    A(f"s_and_b32 s{S_UK}, s{S_UK}, 7")
    A(f"s_lshl_b32 s{S_XBASE}, s{S_MU}, 16")
    A(f"s_lshl_b32 s{S_T0}, s{S_W4}, 9")
    A(f"s_add_u32 s{S_XBASE}, s{S_XBASE}, s{S_T0}")
    A(f"s_lshl_b32 s{S_UBASE}, s{S_W4}, 19")
    A(f"s_lshl_b32 s{S_T0}, s{S_ET}, 7")
    A(f"s_add_u32 s{S_UBASE}, s{S_UBASE}, s{S_T0}")
    A(f"s_lshl_b32 s{S_T2}, s{S_W4}, 15")

def g1_compute(P):
    A = P.A
    c, g, t = G_C, G_G, G_T + 1
    P.crit = True
    P.pump(8)
    A(f"v_lshlrev_b32 v{t}, 7, v{c}")
    A(f"v_and_b32 v{t+1}, 6, v{c}")
    A(f"v_lshrrev_b32 v{t+2}, 1, v{g}")
    A(f"v_or_b32 v{t+1}, v{t+1}, v{t+2}")
    A(f"v_lshl_add_u32 v{t}, v{t+1}, 4, v{t}")
    A(f"v_and_b32 v{t+1}, 1, v{g}")
    A(f"v_lshl_add_u32 v{t}, v{t+1}, 3, v{t}")
    A(f"s_and_b32 s{S_T0}, s{S_UK}, 1")
    A(f"s_lshl_b32 s{S_T0}, s{S_T0}, 6")
    A(f"s_or_b32 s{S_T0}, s{S_T0}, s{S_T2}")
    A(f"v_xor_b32 v{G_XA}, s{S_T0}, v{t}")
    for fh in range(1, 4): A(f"v_xor_b32 v{G_XA+fh}, {32*fh}, v{G_XA}")
    A(f"s_add_u32 s{S_T0}, s{S_T2}, 16384")
    for i in range(4): A(f"v_add_u32 v{V_TR+i}, s{S_T0}, v{V_TR+i}")
    def reads(j):
        P.need(("u", j)); P.need(("x", j >> 1))
        b = 24 * (j % 2)
        for i in range(4):
            for hf in range(2):
                P.ds(f"ds_read_b64_tr_b16 {a(b+4*i+2*hf,2)}, v{V_TR+i} offset:{(j%4)*4096 + hf*2048}", ("ut", j))
        for tt in range(2):
            for h in range(2):
                P.ds(f"ds_read_b64 {a(b+16+4*tt+2*h,2)}, v{G_XA+2*(j&1)+h} offset:{(j>>1)*4096 + tt*2048}", ("xt", j))
        P.flags.add(("uread", j))
    for j in range(8):
        reads(j)
        P.dneed(("xt", j))
        b = 24 * (j % 2)
        for tt in range(2):
            for i in range(4):
                d = v(G_ACC + 16*tt + 4*i, 4)
                A(f"v_mfma_f32_16x16x32_bf16 {d}, {a(b+4*i,4)}, {a(b+16+4*tt,4)}, {'0' if j == 0 else d}")
    P.stamp(2)
    A(f"s_lshl_b32 s{S_T0}, s{S_W4}, 13")
    A(f"s_add_u32 s{S_T0}, s{S_T0}, 131072")
    A(f"v_add_u32 v{t}, s{S_T0}, v{V_L16}")
    A(f"s_sub_u32 s{S_T0}, s{S_RING}, s{S_T2}")
    A(f"s_sub_u32 s{S_T0}, s{S_T0}, 16384")
    for i in range(4): A(f"v_add_u32 v{V_TR+i}, s{S_T0}, v{V_TR+i}")
    for k in range(8):
        P.ds(f"ds_write_b128 v{t}, {v(G_ACC+4*k,4)} offset:{k*1024}")
    P.dall()
    A("s_barrier")
    P.flags.add("ring")
    skip = A.newlabel("g1s")
    A(f"s_cmp_ge_u32 s{S_W4}, 2")
    A(f"s_cbranch_scc1 {skip}")
    A(f"s_lshl_b32 s{S_T0}, s{S_W4}, 12")
    A(f"s_add_u32 s{S_T0}, s{S_T0}, 131072")
    A(f"v_add_u32 v{t}, s{S_T0}, v{V_L16}")
    for w in range(4):
        for i in range(4):
            A(f"ds_read_b128 {v(G_RED+16*w+4*i,4)}, v{t} offset:{w*8192+i*1024}")
    A(f"s_lshl1_add_u32 s{S_T0}, s{S_MU}, s{S_W4}")
    A(f"s_lshl_b32 s{S_T0}, s{S_T0}, 4")
    A(f"s_add_u32 s{S_T0}, s{S_T0}, s{S_ET}")
    A(f"s_lshl_b32 s{S_T0}, s{S_T0}, 11")
    A("s_waitcnt lgkmcnt(8)")
    for e in range(16): A(f"v_add_f32 v{G_RED+e}, v{G_RED+e}, v{G_RED+16+e}")
    A("s_waitcnt lgkmcnt(0)")
    for e in range(16): A(f"v_add_f32 v{G_RED+32+e}, v{G_RED+32+e}, v{G_RED+48+e}")
    for e in range(16): A(f"v_add_f32 v{G_RED+e}, v{G_RED+e}, v{G_RED+32+e}")
    for q in range(8): pk(A, G_ACC + q, G_RED + 2*q, G_RED + 2*q + 1)
    A(f"buffer_store_dwordx4 {v(G_ACC,4)}, v{V_L16}, {S4(S_W)}, s{S_T0} offen sc1")
    A(f"buffer_store_dwordx4 {v(G_ACC+4,4)}, v{V_L16}, {S4(S_W)}, s{S_T0} offen offset:1024 sc1")
    A.label(skip)
    n0 = P.nvm
    P.crit = False
    P.until("tok")
    P.pump(max(0, P.D - 2 - (P.nvm - n0)))
    skip = A.newlabel("g1f")
    A(f"s_cmp_ge_u32 s{S_W4}, 2")
    A(f"s_cbranch_scc1 {skip}")
    A(f"s_lshl1_add_u32 s{S_T0}, s{S_MU}, s{S_W4}")
    A(f"s_lshr_b32 s{S_T1}, s{S_T0}, 2")
    A(f"s_lshl_b32 s{S_T1}, s{S_T1}, 4")
    A(f"s_add_u32 s{S_T1}, s{S_T1}, s{S_ET}")
    A(f"s_and_b32 s{S_T0}, s{S_T0}, 3")
    A(f"s_lshl2_add_u32 s{S_T0}, s{S_T1}, s{S_T0}")
    A(f"s_lshl_b32 s{S_T0}, s{S_T0}, 3")
    A(f"s_add_u32 s{S_T0}, s{S_T0}, {XF_OFF}")
    A(f"v_mov_b32 v{t+1}, s{S_TOK}")
    A(f"v_mov_b32 v{t+2}, s{S_TOK+1}")
    assert (t + 1) % 2 == 0
    A("s_mov_b64 exec, 1")
    A(f"s_waitcnt vmcnt({P.nvm - n0})")
    A(f"buffer_store_dwordx2 v[{t+1}:{t+2}], off, {S4(S_W)}, s{S_T0} sc1")
    A("s_mov_b64 exec, -1")
    A.label(skip)

def sz_unpack(P):
    A = P.A
    P.need("sz")
    for b in (V_SC, V_ZE):
        A(f"v_and_b32 v{b+3}, s{S_MASK}, v{b+1}")
        A(f"v_lshlrev_b32 v{b+2}, 16, v{b+1}")
        A(f"v_and_b32 v{b+1}, s{S_MASK}, v{b}")
        A(f"v_lshlrev_b32 v{b}, 16, v{b}")

def dequant(P, s_):
    A = P.A
    P.need(("q", s_))
    rb = RAW + 32 * (s_ % 3)
    for q in range(4):
        r0 = rb + 8*q; r1 = r0 + 4
        I4 = range(4)
        for i in I4: A(f"v_cvt_f32_i32 v{r0+i}, v{r0+i}")
        for i in I4: A(f"v_cvt_f32_i32 v{r1+i}, v{r1+i}")
        for i in I4: pk(A, r0+i, r0+i, r1+i)
        P.pump(1)
        for i in I4: A(f"v_and_b32 v{r1+i}, s{S_MASK}, v{r0+i}")
        for i in I4: A(f"v_lshlrev_b32 v{r0+i}, 16, v{r0+i}")
        for i in I4: A(f"v_sub_f32 v{r1+i}, v{r1+i}, v{V_ZE+i}")
        P.pump(1)
        for i in I4: A(f"v_sub_f32 v{r0+i}, v{r0+i}, v{V_ZE+i}")
        for i in I4: pk(A, r0+i, r0+i, r1+i)
        for i in I4: A(f"v_and_b32 v{r1+i}, s{S_MASK}, v{r0+i}")
        P.pump(1)
        for i in I4: A(f"v_lshlrev_b32 v{r0+i}, 16, v{r0+i}")
        for i in I4: A(f"v_mul_f32 v{r1+i}, v{r1+i}, v{V_SC+i}")
        for i in I4: A(f"v_mul_f32 v{r0+i}, v{r0+i}, v{V_SC+i}")
        for i in I4: pk(A, WQ + 16*s_ + 4*i + q, r0+i, r1+i)
        P.pump(1)
    P.flags.add(("dq", s_))

def red_write(P, slots):
    A = P.A
    T = V_QO
    for t in slots:
        if t == 0:
            A(f"v_add_u32 v{T}, s{S_RING}, v{V_L16}")
        else:
            A(f"s_add_u32 s{S_T0}, s{S_W4}, {t}")
            A(f"s_and_b32 s{S_T0}, s{S_T0}, 3")
            A(f"s_mul_i32 s{S_T0}, s{S_T0}, 12288")
            A(f"s_add_u32 s{S_T0}, s{S_T0}, {SCR + (t-1)*4096}")
            A(f"v_add_u32 v{T+t}, s{S_T0}, v{V_L16}")

def g2(P):
    A = P.A
    if P.cls == "B": A("s_barrier")
    red_write(P, (1, 2, 3))
    T = V_QO
    A(f"s_mul_i32 s{S_T0}, s{S_W4}, 12288")
    A(f"s_add_u32 s{S_T0}, s{S_T0}, {SCR}")
    A(f"v_add_u32 v{T}, s{S_T0}, v{V_L16}")
    for s_ in range(8):
        P.need(("xr", s_))
        for t in (1, 2, 3, 0):
            for i in range(4):
                d = v(ACC + 16*t + 4*i, 4)
                A(f"v_mfma_f32_16x16x32_bf16 {d}, {v(WQ+16*s_+4*i,4)}, {a(16*s_+4*t,4)}, {'0' if s_ == 0 else d}")
                if i % 2 == 1 and s_ < 7: P.pump(1)
    P.stamp(8)
    for t in (1, 2, 3):
        for i in range(4):
            P.ds(f"ds_write_b128 v{T+t}, {v(ACC+16*t+4*i,4)} offset:{i*1024}")
    ao_setup(P, H_OFF, 112 * 1024, 28 * 1024)
    P.dall()
    A("s_barrier")
    R0 = 128
    for t in range(3):
        for i in range(4):
            P.ds(f"ds_read_b128 {v(R0+16*t+4*i,4)}, v{T} offset:{t*4096+i*1024}", ("r2", t))
    A(f"s_lshl2_add_u32 s{S_T0}, s{S_MB}, s{S_W4}")
    A(f"s_mul_i32 s{S_T0}, s{S_T0}, 56")
    A(f"s_add_u32 s{S_T0}, s{S_T0}, s{S_CB}")
    A(f"s_lshl_b32 s{S_T0}, s{S_T0}, 11")
    A(f"s_add_u32 s{S_T0}, s{S_T0}, {H_OFF}")
    P.dneed(("r2", 0))
    for e in range(16): A(f"v_add_f32 v{R0+e}, v{R0+e}, v{ACC+e}")
    P.dneed(("r2", 2))
    for e in range(16): A(f"v_add_f32 v{R0+16+e}, v{R0+16+e}, v{R0+32+e}")
    for e in range(16): A(f"v_add_f32 v{R0+e}, v{R0+e}, v{R0+16+e}")
    PK = 176
    for f in range(2):
        for q in range(4):
            r = 2*f + (q >> 1); i = 2*(q & 1)
            pk(A, PK + 4*f + q, R0 + 4*i + r, R0 + 4*(i+1) + r)
    P.vm(f"buffer_store_dwordx4 {v(PK,4)}, v{V_L16}, {S4(S_W)}, s{S_T0} offen sc1")
    P.vm(f"buffer_store_dwordx4 {v(PK+4,4)}, v{V_L16}, {S4(S_W)}, s{S_T0} offen offset:1024 sc1", "hst")
    P.flags.add("g2mma")
    P.crit = False
    P.stamp(5)
    P.pump(P.D - 1)
    A(f"s_mul_i32 s{S_T0}, s{S_CB}, 147")
    A(f"s_lshr_b32 s{S_T0}, s{S_T0}, 11")
    A(f"s_lshl1_add_u32 s{S_T0}, s{S_T0}, s{S_CB}")
    A(f"s_lshl_b32 s{S_T1}, s{S_MB}, 6")
    A(f"s_add_u32 s{S_T0}, s{S_T0}, s{S_T1}")
    A(f"s_lshl2_add_u32 s{S_T0}, s{S_T0}, s{S_W4}")
    A(f"s_lshl_b32 s{S_T0}, s{S_T0}, 3")
    A(f"s_add_u32 s{S_T0}, s{S_T0}, {HF_OFF}")
    A(f"v_mov_b32 v{V_SC}, s{S_TOK}")
    A(f"v_mov_b32 v{V_SC+1}, s{S_TOK+1}")
    A("s_mov_b64 exec, 1")
    P.need("hst", False)
    P.vm(f"buffer_store_dwordx2 v[{V_SC}:{V_SC+1}], off, {S4(S_W)}, s{S_T0} sc1")
    A("s_mov_b64 exec, -1")
    P.flags.add("hflag")

def g3(P):
    A = P.A
    P.until("hok")
    P.D = Cfg.D3
    A("s_barrier")
    red_write(P, (0, 1, 2, 3))
    P.issue(("h", 4))
    for j in range(28):
        P.need(("h", j))
        P.until(("vmoved", j))
        P.dwait_idx(P.didx[("vm", j)])
        k, b = home(j)
        for t in (1, 2, 3, 0):
            for i in range(4):
                d = v(ACC + 16*t + 4*i, 4)
                A(f"v_mfma_f32_16x16x32_bf16 {d}, {R(k,b+4*i,4)}, {v(HR+16*(j%6)+4*t,4)}, {'0' if j == 0 else d}")
                P.pump(1)
        P.flags.add(("g3", j))
        if j in (0, 6, 13, 20, 27): P.stamp(9 + (0, 6, 13, 20, 27).index(j))
    assert not P.Q, P.Q[0]
    T = V_QO
    c, g = V_SC, V_SC + 1
    for t in (1, 2, 3):
        for i in range(4):
            P.ds(f"ds_write_b128 v{T+t}, {v(ACC+16*t+4*i,4)} offset:{i*1024}")
    for i in range(4):
        P.ds(f"ds_write_b128 v{T}, {v(ACC+4*i,4)} offset:{i*1024}")
    A(f"v_bfe_u32 v{c}, v{V_L8}, 3, 4")
    A(f"v_lshrrev_b32 v{g}, 7, v{V_L8}")
    A(f"v_lshlrev_b32 v{T+4}, 9, v{g}")
    A(f"v_lshl_add_u32 v{T+4}, v{c}, 4, v{T+4}")
    A(f"s_mul_i32 s{S_T0}, s{S_W4}, 12288")
    A(f"s_add_u32 s{S_T0}, s{S_T0}, {SCR}")
    A(f"v_add_u32 v{T+5}, s{S_T0}, v{T+4}")
    A(f"v_add_u32 v{T+4}, s{S_RING}, v{T+4}")
    A(f"v_mul_u32_u24 v{T+6}, 7168, v{c}")
    A(f"v_lshl_add_u32 v{T+6}, v{g}, 4, v{T+6}")
    A(f"s_lshl2_add_u32 s{S_T0}, s{S_MB}, s{S_W4}")
    A(f"s_mul_i32 s{S_T0}, s{S_T0}, {16*7168}")
    A(f"s_lshl_b32 s{S_T1}, s{S_CB}, 7")
    A(f"s_add_u32 s{S_T0}, s{S_T0}, s{S_T1}")
    P.dall()
    A("s_barrier")
    R0 = 128
    for s_ in range(2):
        for p in range(4):
            for u in range(2):
                if p == 0: P.ds(f"ds_read_b128 {v(R0+32*s_+8*p+4*u,4)}, v{T+4} offset:{2048*s_+256*u}", ("r3", s_))
                else: P.ds(f"ds_read_b128 {v(R0+32*s_+8*p+4*u,4)}, v{T+5} offset:{(p-1)*4096+2048*s_+256*u}", ("r3", s_))
    for s_ in range(2):
        P.dneed(("r3", s_))
        b = R0 + 32*s_
        for e in range(8): A(f"v_add_f32 v{b+e}, v{b+e}, v{b+8+e}")
        for e in range(8): A(f"v_add_f32 v{b+16+e}, v{b+16+e}, v{b+24+e}")
        for e in range(8): A(f"v_add_f32 v{b+e}, v{b+e}, v{b+16+e}")
        for q in range(4): pk(A, b + 8 + q, b + 2*q, b + 2*q + 1)
        A(f"buffer_store_dwordx4 {v(b+8,4)}, v{T+6}, {S4(S_O)}, s{S_T0} offen offset:{64*s_}")

def vseq(P, j0, j1, lag=2):
    items = []
    for j in range(j0, j1):
        items += q_vdma(P, j)
        m = j - lag
        if m >= 0 and m not in P.moved and m < P.movelimit:
            items += q_vmove(P, m); P.moved.add(m)
    return items
def vmoves(P, upto):
    items = []
    for m in range(upto):
        if m not in P.moved:
            items += q_vmove(P, m); P.moved.add(m)
    return items

def program(A, cls):
    P = Prog(A, cls)
    P.moved = set(); P.movelimit = 8
    A.label("cls_" + cls)
    Q = P.Q
    if cls == "S":
        g1_setup(P)
        Q += q_g1(P) + q_tok(P) + q_tokchk(P)
        g1_compute(P)
        A("s_branch kfin")
        return
    xp, xc = q_poll(P, "x", 16, XF_OFF, 128)
    hp, hc = q_poll(P, "h", 56, HF_OFF, 512)
    hp["pre"] = ["hflag"]
    if cls == "A":
        nv = Cfg.nvA
        P.flags.add("ring")
        for i in range(4): A(f"v_add_u32 v{V_TR+i}, s{S_RING}, v{V_TR+i}")
        Q += q_qw(P, [0]) + q_sz(P) + q_qw(P, [1, 2, 3]) + q_tok(P) + vseq(P, 0, nv) + q_tokchk(P)
        Q += q_qw(P, [4, 5, 6]) + [xp] + q_qw(P, [7]) + [xc] + q_xr(P)
        vn = nv
    else:
        if cls == "B":
            g1_setup(P)
            Q += q_g1(P)
        else:
            P.flags.add("ring")
            for i in range(4): A(f"v_add_u32 v{V_TR+i}, s{S_RING}, v{V_TR+i}")
        Q += q_tok(P) + q_sz(P) + q_qw(P, [0]) + q_tokchk(P) + q_qw(P, [1, 2, 3, 4, 5, 6]) + [xp] + q_qw(P, [7]) + [xc] + q_xr(P)
        vn = 0
    nvp = Cfg.nvpollA if cls == "A" else Cfg.nvpollB
    Q += vseq(P, vn, min(nvp, 10))
    P.movelimit = 20
    Q += vseq(P, max(vn, min(nvp, 10)), nvp) + [hp] + vseq(P, nvp, nvp + 2) + [hc]
    vn = nvp + 2
    P.movelimit = 28
    for j in range(28):
        Q += q_h(P, j)
        if j >= 1 and vn < 28:
            Q += vseq(P, vn, vn + 1); vn += 1
        elif vn == 28:
            Q += vmoves(P, 28) if False else []
        for m in range(28):
            if m not in P.moved and m < vn - 1 + (1 if vn == 28 else 0) and (m < 20 or m - 20 <= j - 6):
                Q += q_vmove(P, m); P.moved.add(m)
    ao_setup(P, XR_OFF, 32 * 1024, 8 * 1024)
    if cls == "B": g1_compute(P)
    else: P.pump(8)
    sz_unpack(P)
    for s_ in range(8):
        P.crit = s_ >= 5
        dequant(P, s_)
        if s_ in (0, 3): P.stamp(14 + (s_ > 0))
    P.stamp(3)
    g2(P)
    g3(P)
    if cls != "A": A("s_branch kfin")

Cfg.nvpollA = 16
Cfg.nvpollB = 8

def build():
    A = Asm()
    A.raw(f".globl {NAME}\n.p2align 8\n.type {NAME},@function\n{NAME}:")
    prologue(A)
    for cls in ("B", "S", "A"):
        program(A, cls)
    A.label("kfin")
    stamp_flush(A)
    A.label("kend")
    A("s_endpgm")
    out = HEADER + "; @launch grid=(256,1,1) block=(256,1,1) lds=163840\n"
    out += '.amdgcn_target "amdgcn-amd-amdhsa--gfx950"\n.text\n'
    out += ".set CODE_LINES, (kend-pcbase+4095)/4096\n"
    out += A.text()
    out += '.section .rodata,"a"\n.p2align 6\n' + kernel_desc(NAME)
    return out

if __name__ == "__main__":
    for kv in sys.argv[2:]:
        k, val = kv.split("=")
        setattr(Cfg, k, json.loads(val) if val[:1] in "0123456789[-" and val else val.replace("+", " "))
    open(sys.argv[1], "w").write(build())
```

```python
import sys, json
from collections import deque
from asmlib import *
NAME = "standalone__weight_only_int_quip__sampling_kernel"

S_X, S_Q, S_S, S_Z, S_U, S_V, S_O, S_W, S_D, S_ST = 28, 32, 36, 40, 44, 48, 52, 56, 60, 64
S_W4, S_MB, S_QB, S_CB, S_TOK = 68, 69, 70, 71, 72
S_HS = 74
S_RING, S_T0, S_T1, S_T2, S_T3 = 81, 82, 83, 84, 85
S_OFF, S_OFF2 = 26, 27
S_KQ, S_G3, S_ETA, S_PS0, S_PS1 = 3, 4, 5, 6, 7
S_STB = 86
XR_OFF, H_OFF = 0, 1 << 20
XF_OFF, HF_OFF, PF_OFF, PX_OFF = 3 << 20, (3 << 20) + 4096, (3 << 20) + 16384, 4 << 20
V_L8, V_L16, V_P = 0, 1, 2
V_VD, V_TR, V_QO, V_CHK = 4, 8, 12, 13
LUT, RAW, WQ = 16, 32, 128
V_AO, V_RA = 16, 24
WREG = 40960
BUF = 24576
SPIN = 30000

class Cfg:
    stamps = False
    D = 8
    D3 = 16
    DS = 12
    qord = (0, 1, 2, 4, 6, 3, 5, 7)
    vlag = 2
    nv1 = 4
    nv2 = 2
    nv3 = 3
    hld = "sc1"
    ost = "sc1"
    vm = ""
    vh = ""
    qm = ""
    qh = ""
    skip = ""
    touch = 1
    fack = 0
    spf = 0

def sreg(k): return S_STB + 2*k if k < 8 else 8 + 2*(k - 8)
def S4(d): return f"s[{d}:{d+3}]"
class Prog:
    def __init__(self, A):
        self.A = A
        self.nvm = 0; self.done = 0; self.idx = {}
        self.nds = 0; self.ddone = 0; self.didx = {}
        self.flags = set(); self.Q = deque(); self.D = Cfg.D
    def vm(self, text, tag=None):
        sk = False
        if "V" in Cfg.skip and S4(S_V) in text: sk = True
        if "H" in Cfg.skip and S4(S_W) in text and "load_dwordx4" in text: sk = True
        if "Q" in Cfg.skip and S4(S_Q) in text: sk = True
        if sk:
            if tag is not None: self.idx[tag] = self.nvm - 1
            return
        self.A(text)
        if tag is not None: self.idx[tag] = self.nvm
        self.nvm += 1
    def wait_idx(self, i):
        if i < self.done: return
        n = min(self.nvm - 1 - i, 63)
        self.A(f"s_waitcnt vmcnt({n})")
        self.done = self.nvm - n
    def ds(self, text, tag=None):
        self.A(text)
        if tag is not None: self.didx[tag] = self.nds
        self.nds += 1
    def dwait_idx(self, i):
        if i < self.ddone: return
        n = min(self.nds - 1 - i, 15)
        self.A(f"s_waitcnt lgkmcnt({n})")
        self.ddone = self.nds - n
    def dall(self): self.dwait_idx(self.nds - 1)
    def wneed(self, it):
        return self.nvm - self.D if it["kind"] == "ld" else self.idx[it["waits"]] if "waits" in it else -1
    def step(self, nb=False):
        if not self.Q: return None
        it = self.Q[0]
        if any(p not in self.flags for p in it.get("pre", ())): return None
        if nb and self.wneed(it) >= self.done: return None
        self.Q.popleft()
        if it["kind"] == "ld" and self.nvm - self.D >= 0: self.wait_idx(self.nvm - self.D)
        it["emit"]()
        return it["kind"]
    def pump(self, n=1, nb=False):
        while n > 0:
            if self.step(nb) is None: return
            n -= 1
    def issue(self, tag, tab=None):
        tab = self.idx if tab is None else tab
        while tag not in tab:
            k = self.step()
            assert k is not None, f"deadlock waiting {tag}; head={self.Q[0] if self.Q else None} flags={sorted(map(str,self.flags))}"
    def need(self, tag, fill=True):
        self.issue(tag)
        while fill and self.idx[tag] >= self.done and self.Q:
            if self.wneed(self.Q[0]) > self.idx[tag]: break
            if self.step() is None: break
        self.wait_idx(self.idx[tag])
    def dneed(self, tag):
        self.issue(tag, self.didx); self.dwait_idx(self.didx[tag])
    def until(self, flag):
        while flag not in self.flags:
            k = self.step()
            assert k is not None, f"deadlock until {flag}; head={self.Q[0] if self.Q else None}"
    def stamp(self, k):
        if Cfg.stamps: self.A(f"s_memrealtime s[{sreg(k)}:{sreg(k)+1}]")

def srd(A, d, lo, hi, nbytes, add=0):
    if add:
        A(f"s_add_u32 s{d}, s{lo}, {add}")
        A(f"s_addc_u32 s{d+1}, s{hi}, 0")
    else:
        A(f"s_mov_b64 s[{d}:{d+1}], s[{lo}:{hi}]")
    A(f"s_mov_b32 s{d+2}, {nbytes}")
    A(f"s_mov_b32 s{d+3}, 0x20000")
def pk(A, d, lo, hi): A(f"v_cvt_pk_bf16_f32 v{d}, v{lo}, v{hi}")
def add2(A, d, x, y, n):
    for e in range(0, n, 2): A(f"v_pk_add_f32 {v(d+e,2)}, {v(x+e,2)}, {v(y+e,2)}")
def mfma(A, d, a_, b_, first): A(f"v_mfma_f32_16x16x32_bf16 {d}, {a_}, {b_}, {'0' if first else d}")

def stamp_flush(A, n=16):
    if not Cfg.stamps: return
    A("s_waitcnt vmcnt(0)")
    A(f"s_memrealtime s[{S_STB+14}:{S_STB+15}]")
    A("s_waitcnt lgkmcnt(0)")
    srd(A, S_ST, 24, 25, 1 << 20, 128 << 20)
    A(f"s_lshl_b32 s{S_T0}, s2, 2")
    A(f"s_add_u32 s{S_T0}, s{S_T0}, s{S_W4}")
    A(f"s_lshl_b32 s{S_T0}, s{S_T0}, 8")
    A("v_mov_b32 v4, 0")
    A("s_mov_b64 exec, 1")
    for k in range(n):
        A(f"v_mov_b32 v6, s{sreg(k)}")
        A(f"v_mov_b32 v7, s{sreg(k)+1}")
        A(f"buffer_store_dwordx2 v[6:7], v4, {S4(S_ST)}, s{S_T0} offen offset:{k*8}")
        A("s_nop 1")

def stamp_init2(A):
    if Cfg.stamps:
        A(f"s_memrealtime s[{S_STB+2}:{S_STB+3}]")
        for k in range(8, 16): A(f"s_mov_b64 s[{sreg(k)}:{sreg(k)+1}], 0")

def dma_chunk(A, row, ch, t):
    A(f"v_lshrrev_b32 v{row}, 3, v0")
    A(f"v_and_b32 v{ch}, 6, v{row}")
    A(f"v_and_b32 v{t}, 7, v0")
    A(f"v_xor_b32 v{ch}, v{ch}, v{t}")
    A(f"v_lshlrev_b32 v{ch}, 4, v{ch}")
def tr_addrs(A, t):
    A(f"v_lshrrev_b32 v{t}, 2, v0")
    A(f"v_and_b32 v{t+1}, 6, v{t}")
    A(f"v_bfe_u32 v{t+2}, v0, 1, 1")
    A(f"v_or_b32 v{t+1}, v{t+1}, v{t+2}")
    A(f"v_lshlrev_b32 v{t+1}, 4, v{t+1}")
    A(f"v_lshl_add_u32 v{t+1}, v{t}, 7, v{t+1}")
    A(f"v_and_b32 v{t+2}, 1, v0")
    A(f"v_lshl_add_u32 v{V_TR}, v{t+2}, 3, v{t+1}")
    for i in range(1, 4): A(f"v_xor_b32 v{V_TR+i}, {32*i}, v{V_TR}")
    for i in range(4): A(f"v_add_u32 v{V_TR+i}, s{S_RING}, v{V_TR+i}")

def prologue(A):
    A("s_cmp_ge_u32 s2, 256")
    A("s_cbranch_scc1 kend")
    A("s_load_dwordx16 s[8:23], s[0:1], 0")
    A("s_load_dwordx2 s[24:25], s[0:1], 64")
    if Cfg.stamps:
        A(f"s_memrealtime s[{S_STB}:{S_STB+1}]")
        for k in range(1, 8): A(f"s_mov_b64 s[{S_STB+2*k}:{S_STB+2*k+1}], 0")
    A(f"s_memrealtime s[{S_TOK}:{S_TOK+1}]")
    A(f"s_getpc_b64 s[{S_ST}:{S_ST+1}]")
    A.label("pcbase")
    A(f"s_mov_b32 s{S_ST+2}, kend-pcbase")
    A(f"s_mov_b32 s{S_ST+3}, 0x20000")
    A(f"s_lshr_b32 s{S_T3}, s2, 3")
    A(f"s_mul_i32 s{S_T0}, s{S_T3}, ((kend-pcbase+4095)/4096)*128")
    A("v_lshlrev_b32 v254, 7, v0")
    A("v_cmp_gt_u32 vcc, (kend-pcbase+4095)/4096, v0")
    A("s_and_saveexec_b64 s[6:7], vcc")
    A("s_cbranch_execz pfskip")
    A(f"buffer_load_dword v255, v254, {S4(S_ST)}, s{S_T0} offen")
    A.label("pfskip")
    A("s_mov_b64 exec, -1")
    A("v_lshrrev_b32 v1, 6, v0")
    A("v_and_b32 v0, 63, v0")
    A(f"v_readfirstlane_b32 s{S_W4}, v1")
    A(f"s_and_b32 s{S_T2}, s2, 7")
    A(f"s_and_b32 s{S_MB}, s{S_T3}, 3")
    A(f"s_mul_i32 s{S_RING}, s{S_W4}, {WREG}")
    A(f"v_lshlrev_b32 v{V_L16}, 4, v0")
    A(f"s_cmp_ge_u32 s{S_T3}, 28")
    A("s_cbranch_scc1 cls_S")

def q_tok(P):
    def e(): P.vm(f"buffer_load_dwordx2 v[{V_P}:{V_P+1}], off, {S4(S_D)}, 0 sc1", "tok")
    return [dict(kind="ld", emit=e)]
def q_tokchk(P):
    A = P.A
    def e():
        P.wait_idx(P.idx["tok"])
        l = A.newlabel("tokl"); o = A.newlabel("toko")
        A(f"s_mov_b32 s{S_T3}, {SPIN}")
        A.label(l)
        A(f"v_readfirstlane_b32 s{S_TOK}, v{V_P}")
        A(f"v_readfirstlane_b32 s{S_TOK+1}, v{V_P+1}")
        A(f"s_cmp_lg_u64 s[{S_TOK}:{S_TOK+1}], 0")
        A(f"s_cbranch_scc1 {o}")
        A(f"s_sub_u32 s{S_T3}, s{S_T3}, 1")
        A(f"s_cbranch_scc1 {o}")
        A(f"buffer_load_dwordx2 v[{V_P}:{V_P+1}], off, {S4(S_D)}, 0 sc1")
        A("s_waitcnt vmcnt(0)")
        A(f"s_branch {l}")
        A.label(o)
        P.flags.add("tok")
    return [dict(kind="act", emit=e, waits="tok")]

def q_poll(P, name, nl, addr, st=None, pre=()):
    A = P.A
    mask = (1 << nl) - 1
    def setup():
        addr()
        A(f"s_mov_b64 exec, {mask}" if mask <= 64 else f"s_mov_b32 exec_lo, {mask}\ns_mov_b32 exec_hi, 0")
    def e():
        setup()
        P.vm(f"buffer_load_dwordx2 v[{V_P}:{V_P+1}], v{V_L8}, {S4(S_W)}, s{S_T1} offen sc1", name + "poll")
        A("s_mov_b64 exec, -1")
    def chk():
        P.wait_idx(P.idx[name + "poll"])
        if name == "h": P.stamp(14)
        l = A.newlabel("pl"); o = A.newlabel("po")
        setup()
        A(f"s_mov_b32 s{S_T3}, {SPIN}")
        A.label(l)
        A(f"v_cmp_ne_u64 vcc, s[{S_TOK}:{S_TOK+1}], v[{V_P}:{V_P+1}]")
        A(f"s_cbranch_vccz {o}")
        A(f"s_sub_u32 s{S_T3}, s{S_T3}, 1")
        A(f"s_cbranch_scc1 {o}")
        A(f"buffer_load_dwordx2 v[{V_P}:{V_P+1}], v{V_L8}, {S4(S_W)}, s{S_T1} offen sc1")
        A("s_waitcnt vmcnt(0)")
        A(f"s_branch {l}")
        A.label(o)
        A("s_mov_b64 exec, -1")
        P.flags.add(name + "ok")
        if st is not None: P.stamp(st)
    return dict(kind="ld", emit=e, pre=list(pre)), dict(kind="act", emit=chk, waits=name + "poll")

def flag_store(P, tv, waittag):
    A = P.A
    A(f"v_mov_b32 v{tv}, s{S_TOK}")
    A(f"v_mov_b32 v{tv+1}, s{S_TOK+1}")
    A("s_mov_b64 exec, 1")
    P.wait_idx(P.idx[waittag])
    P.vm(f"buffer_store_dwordx2 v[{tv}:{tv+1}], off, {S4(S_W)}, s{S_T0} sc1")
    A("s_mov_b64 exec, -1")

def red_addrs(A, ra):
    A(f"v_add_u32 v{ra}, s{S_RING}, v{V_L16}")
    for t in range(1, 4):
        A(f"s_xor_b32 s{S_T0}, s{S_W4}, {t}")
        A(f"s_mul_i32 s{S_T0}, s{S_T0}, {WREG}")
        A(f"v_add_u32 v{ra+t}, s{S_T0}, v{V_L16}")

def prog_S(A):
    P = Prog(A); P.D = Cfg.DS
    A.label("cls_S")
    UD, XA, RA, T, ACC, RED = 4, 16, 24, 28, 128, 32
    S_XB, S_UB, S_X8 = 3, 4, 5
    A(f"s_mov_b32 s{S_X8}, s{S_T2}")
    dma_chunk(A, T, T+1, T+2)
    A(f"v_lshl_add_u32 v{UD}, v{T}, 11, v{T+1}")
    for q in range(1, 4): A(f"v_add_u32 v{UD+q}, {q*(8*2048-1024)}, v{UD}")
    A(f"s_lshr_b32 s{S_T0}, s{S_W4}, 1")
    A(f"s_lshl1_add_u32 s{S_T0}, s{S_MB}, s{S_T0}")
    A(f"s_lshl_b32 s{S_XB}, s{S_T0}, 16")
    A(f"s_lshl_b32 s{S_T0}, s{S_W4}, 9")
    A(f"s_add_u32 s{S_XB}, s{S_XB}, s{S_T0}")
    A(f"s_lshl_b32 s{S_UB}, s{S_W4}, 19")
    A(f"s_lshl_b32 s{S_T0}, s{S_X8}, 8")
    A(f"s_add_u32 s{S_UB}, s{S_UB}, s{S_T0}")
    A("s_waitcnt lgkmcnt(0)")
    srd(A, S_X, 8, 9, 256 * 1024 * 2)
    srd(A, S_U, 16, 17, 1024 * 1024 * 2)
    units = []
    for gq in range(4):
        units += [("u", gq, 0, 0), ("x", gq, 0, 0), ("x", gq, 1, 0), ("u", gq, 0, 1), ("u", gq, 1, 0), ("u", gq, 1, 1)]
    NR = 10
    def dma(n):
        k, gq, f, b = units[n]
        items = []
        for q in range(4):
            def e(q=q):
                if q == 0:
                    if n >= NR: P.dwait_idx(P.didx[("rd", n - NR)])
                    A(f"s_add_u32 s{S_T0}, s{S_MB}, {gq}")
                    A(f"s_and_b32 s{S_T0}, s{S_T0}, 3")
                    if k == "x":
                        A(f"s_lshl_b32 s{S_T0}, s{S_T0}, 7")
                        A(f"s_add_u32 s{S_OFF}, s{S_T0}, s{S_XB}")
                        if f: A(f"s_xor_b32 s{S_OFF}, s{S_OFF}, 65536")
                    else:
                        A(f"s_lshl_b32 s{S_T0}, s{S_T0}, 17")
                        A(f"s_add_u32 s{S_OFF}, s{S_T0}, s{S_UB}")
                        if f or b: A(f"s_add_u32 s{S_OFF}, s{S_OFF}, {f*65536 + b*128}")
                    A(f"s_add_u32 m0, s{S_RING}, {(n%NR)*4096}")
                    A("s_nop 0")
                P.vm(f"buffer_load_dwordx4 v{UD+q}, {S4(S_X if k=='x' else S_U)}, s{S_OFF} offen offset:{q*1024} lds", ("un", n) if q == 3 else None)
            items.append(dict(kind="ld", emit=e, pre=([("rd", n - NR)] if n >= NR else [])))
        return items
    for n in range(24):
        P.Q += dma(n)
        if n == 5: P.Q += q_tok(P)
    P.Q += q_tokchk(P)
    P.pump(12)
    srd(A, S_W, 24, 25, 16 << 20)
    srd(A, S_D, 22, 23, 256)
    srd(A, S_V, 18, 19, 3584 * 3584 * 2)
    P.pump(Cfg.DS - 12)
    stamp_init2(A)
    tr_addrs(A, T)
    c, g = T, T + 1
    A(f"v_and_b32 v{c}, 15, v0")
    A(f"v_lshrrev_b32 v{g}, 4, v0")
    A(f"v_lshlrev_b32 v{XA}, 7, v{c}")
    A(f"v_and_b32 v{T+2}, 6, v{c}")
    A(f"v_lshrrev_b32 v{T+3}, 1, v{g}")
    A(f"v_or_b32 v{T+2}, v{T+2}, v{T+3}")
    A(f"v_lshl_add_u32 v{XA}, v{T+2}, 4, v{XA}")
    A(f"v_and_b32 v{T+2}, 1, v{g}")
    A(f"v_lshl_add_u32 v{XA}, v{T+2}, 3, v{XA}")
    A(f"s_and_b32 s{S_T0}, s{S_W4}, 1")
    A(f"s_lshl_b32 s{S_T0}, s{S_T0}, 11")
    A(f"v_xor_b32 v{XA}, s{S_T0}, v{XA}")
    for k in range(1, 8): A(f"v_xor_b32 v{XA+k}, {32*(k&3) + 2048*(k>>2)}, v{XA}")
    for k in range(8): A(f"v_add_u32 v{XA+k}, s{S_RING}, v{XA+k}")
    red_addrs(A, RA)
    def rd(n):
        k, gq, f, b = units[n]
        P.need(("un", n))
        base = 16 * (n % 16); lo = (n % NR) * 4096
        if k == "u":
            for i in range(4):
                for hf in range(2):
                    P.ds(f"ds_read_b64_tr_b16 {a(base+4*i+2*hf,2)}, v{V_TR+i} offset:{lo + hf*2048}", ("rd", n))
        else:
            for ff in range(2):
                for tt in range(2):
                    for h in range(2):
                        P.ds(f"ds_read_b64 {a(base+8*ff+4*tt+2*h,2)}, v{XA+4*tt+2*ff+h} offset:{lo}", ("rd", n))
        P.flags.add(("rd", n))
    def mm(n, last=False):
        k, gq, f, b = units[n]
        P.dneed(("rd", n))
        x0 = 6 * gq + 1
        P.dneed(("rd", x0 + 1))
        for t in (1, 2, 3, 0):
            xb = 16 * ((x0 + (t >> 1)) % 16) + 8*f + 4*(t & 1)
            for i in range(4):
                d = v(ACC + 32*t + 16*b + 4*i, 4)
                mfma(A, d, a(16*(n % 16) + 4*i, 4), a(xb, 4), gq == 0 and f == 0)
                if i % 2: P.pump(1, True)
    order = [n for n in range(24)]
    pend = []
    for n in order:
        rd(n)
        if n in (0, 5, 11, 17, 23): P.stamp(8 + (0, 5, 11, 17, 23).index(n))
        if units[n][0] == "u": pend.append(n)
        while len(pend) > 1 and ("rd", 6*units[pend[0]][1] + 2) in P.flags:
            mm(pend.pop(0))
    def dump(b):
        for t in (1, 2, 3):
            for i in range(4):
                P.ds(f"ds_write_b128 v{RA}, {v(ACC+32*t+16*b+4*i,4)} offset:{(t-1)*8192 + b*4096 + i*1024}")
    assert pend == [23]
    mm(23)
    P.stamp(2)
    dump(0); dump(1)
    P.until("tok")
    A(f"s_lshl2_add_u32 s{S_T0}, s{S_MB}, s{S_W4}")
    A(f"s_lshl_b32 s{S_T0}, s{S_T0}, 3")
    A(f"s_add_u32 s{S_T0}, s{S_T0}, s{S_X8}")
    A(f"s_lshl_b32 s{S_OFF}, s{S_T0}, 12")
    P.dall()
    A("s_barrier")
    for b in range(2):
        for t in (1, 2, 3):
            for i in range(4):
                P.ds(f"ds_read_b128 {v(RED+48*b+16*(t-1)+4*i,4)}, v{RA+t} offset:{(t-1)*8192 + b*4096 + i*1024}", ("r1", b, t))
    for b in range(2):
        r = RED + 48*b
        P.dneed(("r1", b, 1)); add2(A, r, r, ACC + 16*b, 16)
        P.dneed(("r1", b, 3)); add2(A, r+16, r+16, r+32, 16); add2(A, r, r, r+16, 16)
        for q in range(8): pk(A, r+16+q, r+2*q, r+2*q+1)
        for f in range(2):
            P.vm(f"buffer_store_dwordx4 {v(r+16+4*f,4)}, v{V_L16}, {S4(S_W)}, s{S_OFF} offen offset:{(2*b+f)*1024} sc1", "xst")
    A(f"s_lshr_b32 s{S_T0}, s{S_X8}, 1")
    A(f"s_lshl2_add_u32 s{S_T0}, s{S_MB}, s{S_T0}")
    A(f"s_lshl_b32 s{S_T0}, s{S_T0}, 7")
    A(f"s_and_b32 s{S_T1}, s{S_X8}, 1")
    A(f"s_lshl2_add_u32 s{S_T1}, s{S_T1}, s{S_W4}")
    A(f"s_lshl3_add_u32 s{S_T0}, s{S_T1}, s{S_T0}")
    A(f"s_add_u32 s{S_T0}, s{S_T0}, {XF_OFF}")
    P.stamp(3)
    flag_store(P, T, "xst")
    P.stamp(4)
    A("s_branch kfin")

COLD = []
def q_qw(P, p):
    A = P.A
    items = []
    fl = Cfg.qm if Cfg.qord[p] < 2 else Cfg.qh
    for j in range(8):
        def e(j=j):
            if j == 0:
                A(f"s_add_u32 s{S_OFF}, s{S_QB}, {Cfg.qord[p]}")
                A(f"s_and_b32 s{S_OFF}, s{S_OFF}, 7")
                A(f"s_mul_i32 s{S_OFF}, s{S_OFF}, {32*14336}")
            else:
                A(f"s_add_u32 s{S_OFF}, s{S_OFF}, {(13 if j == 4 else 1)*14336}")
            P.vm(f"buffer_load_dwordx4 {v(RAW+32*(p%3)+4*j,4)}, v{V_QO}, {S4(S_Q)}, s{S_OFF} offen {fl}", ("q", p) if j == 7 else None)
        items.append(dict(kind="ld", emit=e, pre=([("dq", p - 3)] if p >= 3 else [])))
    return items

def vorder():
    out = []; L = Cfg.vlag
    for k in range(7 + L):
        if k < 7: out.append((k, 0))
        if k - L >= 0: out.append((k - L, 1))
    return out
NRV = 6
def q_vdma(P, n):
    A = P.A
    s_, b = vorder()[n]
    items = []
    for q in range(4):
        def e(q=q):
            if q == 0:
                if n >= NRV: P.dwait_idx(P.didx[("vm", n - NRV)])
                A(f"s_lshr_b32 s{S_OFF2}, s{S_HS+s_}, 11")
                A(f"s_mul_i32 s{S_OFF2}, s{S_OFF2}, {64*7168}")
                A(f"s_bitcmp1_b32 s{S_HS+s_}, 10")
                A(f"s_cselect_b32 s{S_T0}, {8*7168}, 0")
                A(f"s_add_u32 s{S_OFF2}, s{S_OFF2}, s{S_T0}")
                A(f"s_add_u32 s{S_OFF2}, s{S_OFF2}, s{S_ETA}")
                if b: A(f"s_xor_b32 s{S_OFF2}, s{S_OFF2}, 128")
                A(f"s_add_u32 m0, s{S_RING}, {(n%NRV)*4096}")
                A("s_nop 0")
            P.vm(f"buffer_load_dwordx4 v{V_VD+q}, {S4(S_V)}, s{S_OFF2} offen offset:{q*1024} {Cfg.vh if b else Cfg.vm} lds", ("v", n) if q == 3 else None)
        items.append(dict(kind="ld", emit=e, pre=["vset"] + ([("vmoved", n - NRV)] if n >= NRV else [])))
    return items
def q_vmove(P, n):
    s_, b = vorder()[n]
    def e():
        P.wait_idx(P.idx[("v", n)])
        for i in range(4):
            for hf in range(2):
                P.ds(f"ds_read_b64_tr_b16 {a(32*s_+16*b+4*i+2*hf, 2)}, v{V_TR+i} offset:{(n%NRV)*4096 + hf*2048}", ("vm", n))
        P.flags.add(("vmoved", n))
    return [dict(kind="act", emit=e, waits=("v", n))]
def vseq(P, cnt, lag=3):
    items = []
    for _ in range(cnt):
        if P.vn >= 14: break
        items += q_vdma(P, P.vn); P.vn += 1
        while P.vmn < P.vn - lag:
            items += q_vmove(P, P.vmn); P.vmn += 1
    return items
def vflush(P):
    items = []
    while P.vmn < P.vn:
        items += q_vmove(P, P.vmn); P.vmn += 1
    return items

def xr_home(p):
    return [("a", 224), ("a", 240), ("v", 96), ("v", 112)][p] if p < 4 else ("v", WQ + 16*(p - 4))
def q_xr(P):
    A = P.A
    items = []
    for p in range(8):
        k, b = xr_home(p)
        for t in range(4):
            def e(p=p, t=t, k=k, b=b):
                if t == 0:
                    A(f"s_add_u32 s{S_OFF}, s{S_QB}, {Cfg.qord[p]}")
                    A(f"s_and_b32 s{S_OFF}, s{S_OFF}, 7")
                    A(f"s_lshl_b32 s{S_OFF}, s{S_OFF}, 10")
                P.vm(f"buffer_load_dwordx4 {R(k,b+4*t,4)}, v{V_AO+t}, {S4(S_W)}, s{S_OFF} offen {Cfg.hld}", ("xr", p) if t == 3 else None)
            items.append(dict(kind="ld", emit=e, pre=["xok", "ao"] + ([("g2", p - 4)] if p >= 4 else [])))
    return items

def lut_build(P):
    A = P.A
    SC, ZE, T = WQ + 96, WQ + 100, WQ + 104
    P.need("sz")
    for b in (SC, ZE):
        A(f"v_and_b32 v{b+3}, 0xffff0000, v{b+1}")
        A(f"v_lshlrev_b32 v{b+2}, 16, v{b+1}")
        A(f"v_and_b32 v{b+1}, 0xffff0000, v{b}")
        A(f"v_lshlrev_b32 v{b}, 16, v{b}")
    fl = ["0", "1.0", "2.0", "0x40400000", "4.0", "0x40a00000", "0x40c00000", "0x40e00000"]
    PP = WQ + 64
    for u in range(4):
        I4 = range(4)
        for i in I4: A(f"v_sub_f32 v{T+i}, {fl[2*u]}, v{ZE+i}")
        for i in I4: A(f"v_sub_f32 v{T+4+i}, {fl[2*u+1]}, v{ZE+i}")
        for i in I4: pk(A, T+i, T+i, T+4+i)
        for i in I4: A(f"v_and_b32 v{T+4+i}, 0xffff0000, v{T+i}")
        for i in I4: A(f"v_lshlrev_b32 v{T+i}, 16, v{T+i}")
        for i in I4: A(f"v_mul_f32 v{T+4+i}, v{T+4+i}, v{SC+i}")
        for i in I4: A(f"v_mul_f32 v{T+i}, v{T+i}, v{SC+i}")
        for i in I4: pk(A, PP+4*u+i, T+i, T+4+i)
        P.pump(2, True)
    A(f"s_mov_b32 s{S_PS0}, 0x06040200")
    A(f"s_mov_b32 s{S_PS1}, 0x07050301")
    for i in range(4):
        for hh in range(2):
            A(f"v_perm_b32 v{LUT+4*i+hh}, v{PP+8*hh+4+i}, v{PP+8*hh+i}, s{S_PS0}")
            A(f"v_perm_b32 v{LUT+4*i+2+hh}, v{PP+8*hh+4+i}, v{PP+8*hh+i}, s{S_PS1}")
    A(f"s_mov_b32 s{S_PS0}, 0x05010400")
    A(f"s_mov_b32 s{S_PS1}, 0x07030602")

def dequant(P, p):
    A = P.A
    P.need(("q", p))
    rb = RAW + 32*(p % 3); W = WQ + 16*p
    r = lambda j, i: rb + 4*j + i
    for hh in range(2):
        for i in range(4):
            A(f"v_cvt_pk_u16_u32 v{W+4*i+2*hh}, v{r(4*hh,i)}, v{r(4*hh+2,i)}")
            A(f"v_cvt_pk_u16_u32 v{W+4*i+2*hh+1}, v{r(4*hh+1,i)}, v{r(4*hh+3,i)}")
        P.pump(1, True)
    A(f"v_or3_b32 v{V_CHK}, v{W}, v{W+1}, v{W+2}")
    A(f"v_or3_b32 v{V_CHK+1}, v{W+3}, v{W+4}, v{W+5}")
    for k in range(6, 14, 4):
        A(f"v_or3_b32 v{V_CHK}, v{V_CHK}, v{W+k}, v{W+k+1}")
        A(f"v_or3_b32 v{V_CHK+1}, v{V_CHK+1}, v{W+k+2}, v{W+k+3}")
    A(f"v_or3_b32 v{V_CHK}, v{V_CHK}, v{W+14}, v{W+15}")
    A(f"v_or_b32 v{V_CHK}, v{V_CHK}, v{V_CHK+1}")
    A(f"v_and_b32 v{V_CHK}, 0xfff8fff8, v{V_CHK}")
    A(f"v_cmp_ne_u32 vcc, 0, v{V_CHK}")
    for k in range(0, 16, 2): A(f"v_lshl_or_b32 v{W+k}, v{W+k+1}, 8, v{W+k}")
    A(f"s_cbranch_vccnz dqg{p}")
    for hh in range(2):
        for i in range(4):
            d = W + 4*i + 2*hh
            A(f"v_perm_b32 v{d+1}, v{LUT+4*i+1}, v{LUT+4*i}, v{d}")
            A(f"v_perm_b32 v{rb+4*hh+i}, v{LUT+4*i+3}, v{LUT+4*i+2}, v{d}")
        for i in range(4):
            d = W + 4*i + 2*hh
            A(f"v_perm_b32 v{d}, v{rb+4*hh+i}, v{d+1}, s{S_PS0}")
            A(f"v_perm_b32 v{d+1}, v{rb+4*hh+i}, v{d+1}, s{S_PS1}")
    A.label(f"dqr{p}")
    P.flags.add(("dq", p))
    P.pump(2, True)
    C = Asm()
    C.label(f"dqg{p}")
    SC = W; ZE = W + 4
    C(f"v_bfe_u32 v{V_CHK}, v{V_L8}, 3, 4")
    C(f"v_lshlrev_b32 v{V_CHK}, 3, v{V_CHK}")
    C(f"s_lshl_b32 s{S_T0}, s{S_CB}, 7")
    C(f"buffer_load_dwordx2 v[{SC}:{SC+1}], v{V_CHK}, {S4(S_S)}, s{S_T0} offen")
    C(f"buffer_load_dwordx2 v[{ZE}:{ZE+1}], v{V_CHK}, {S4(S_Z)}, s{S_T0} offen")
    C("s_waitcnt vmcnt(0)")
    for b in (SC, ZE):
        C(f"v_and_b32 v{b+3}, 0xffff0000, v{b+1}")
        C(f"v_lshlrev_b32 v{b+2}, 16, v{b+1}")
        C(f"v_and_b32 v{b+1}, 0xffff0000, v{b}")
        C(f"v_lshlrev_b32 v{b}, 16, v{b}")
    for q in range(4):
        r0 = rb + 8*q; r1 = r0 + 4
        for i in range(4):
            C(f"v_cvt_f32_i32 v{r0+i}, v{r0+i}")
            C(f"v_cvt_f32_i32 v{r1+i}, v{r1+i}")
            pk(C, r0+i, r0+i, r1+i)
            C(f"v_and_b32 v{r1+i}, 0xffff0000, v{r0+i}")
            C(f"v_lshlrev_b32 v{r0+i}, 16, v{r0+i}")
            C(f"v_sub_f32 v{r1+i}, v{r1+i}, v{ZE+i}")
            C(f"v_sub_f32 v{r0+i}, v{r0+i}, v{ZE+i}")
            pk(C, r0+i, r0+i, r1+i)
            C(f"v_and_b32 v{r1+i}, 0xffff0000, v{r0+i}")
            C(f"v_lshlrev_b32 v{r0+i}, 16, v{r0+i}")
            C(f"v_mul_f32 v{r1+i}, v{r1+i}, v{SC+i}")
            C(f"v_mul_f32 v{r0+i}, v{r0+i}, v{SC+i}")
            pk(C, r0+i, r0+i, r1+i)
    for q in range(4):
        for i in range(4): C(f"v_mov_b32 v{W+4*i+q}, v{rb+8*q+i}")
    C(f"s_branch dqr{p}")
    COLD.append(C.text())

def g2(P):
    A = P.A
    ACC = 32
    for t in range(4):
        A(f"s_xor_b32 s{S_T0}, s{S_W4}, {t}")
        A(f"s_lshl2_add_u32 s{S_T0}, s{S_MB}, s{S_T0}")
        A(f"s_lshl2_add_u32 s{S_T0}, s{S_T0}, s{S_W4}")
        A(f"s_lshl_b32 s{S_T0}, s{S_T0}, 13")
        A(f"v_add_u32 v{V_AO+t}, s{S_T0}, v{V_L16}")
    P.flags.add("ao")
    red_addrs(A, V_RA)
    for p in range(8):
        P.need(("xr", p))
        k, b = xr_home(p)
        for t in (1, 2, 3, 0):
            for i in range(4):
                mfma(A, v(ACC+16*t+4*i, 4), v(WQ+16*p+4*i, 4), R(k, b+4*t, 4), p == 0)
                if i % 2 == 1: P.pump(1, True)
        P.flags.add(("g2", p))
    P.stamp(8)
    for t in (1, 2, 3):
        for i in range(4):
            P.ds(f"ds_write_b128 v{V_RA}, {v(ACC+16*t+4*i,4)} offset:{BUF + (t-1)*4096 + i*1024}")
    A(f"s_lshl2_add_u32 s{S_T0}, s{S_MB}, s{S_W4}")
    A(f"s_mul_i32 s{S_T0}, s{S_T0}, 56")
    A(f"s_add_u32 s{S_T0}, s{S_T0}, s{S_CB}")
    A(f"s_lshl_b32 s{S_T0}, s{S_T0}, 11")
    A(f"s_add_u32 s{S_OFF}, s{S_T0}, {H_OFF}")
    P.dall()
    A("s_barrier")
    R0 = 128
    for t in range(3):
        for i in range(4):
            P.ds(f"ds_read_b128 {v(R0+16*t+4*i,4)}, v{V_RA+1+t} offset:{BUF + t*4096 + i*1024}", ("r2", t))
    P.dneed(("r2", 0)); add2(A, R0, R0, ACC, 16)
    P.dneed(("r2", 2)); add2(A, R0+16, R0+16, R0+32, 16); add2(A, R0, R0, R0+16, 16)
    PK = 176
    for f in range(2):
        for q in range(4):
            r = 2*f + (q >> 1); i = 2*(q & 1)
            pk(A, PK + 4*f + q, R0 + 4*i + r, R0 + 4*(i+1) + r)
        P.vm(f"buffer_store_dwordx4 {v(PK+4*f,4)}, v{V_L16}, {S4(S_W)}, s{S_OFF} offen offset:{1024*f} sc1", "hst")
    P.flags.add("hst")
    P.stamp(5)
    A(f"s_and_b32 s{S_T1}, s{S_G3}, 1")
    A(f"s_lshl_b32 s{S_T1}, s{S_T1}, 3")
    A(f"s_lshr_b32 s{S_T0}, s{S_W4}, 1")
    A(f"s_add_u32 s{S_T1}, s{S_T1}, s{S_T0}")
    for p in range(4):
        A(f"s_add_u32 s{S_T0}, s{S_KQ}, {1+p}")
        A(f"s_and_b32 s{S_T0}, s{S_T0}, 3")
        A(f"s_lshl1_add_u32 s{S_T0}, s{S_T0}, s{S_T1}")
        for a_ in range(2):
            if a_: A(f"s_xor_b32 s{S_T0}, s{S_T0}, 1")
            A(f"s_mul_i32 s{S_T2}, s{S_T0}, {112*1024}")
            A(f"s_add_u32 s{S_T2}, s{S_T2}, {H_OFF}")
            A(f"v_add_u32 v{V_AO+2*p+a_}, s{S_T2}, v{V_L16}")
    P.pump(P.D - 2, True)
    A(f"s_lshr_b32 s{S_T0}, s{S_MB}, 1")
    A(f"s_mul_i32 s{S_T0}, s{S_T0}, 56")
    A(f"s_add_u32 s{S_T0}, s{S_T0}, s{S_CB}")
    A(f"s_and_b32 s{S_T1}, s{S_MB}, 1")
    A(f"s_lshl1_add_u32 s{S_T0}, s{S_T0}, s{S_T1}")
    A(f"s_lshl2_add_u32 s{S_T0}, s{S_T0}, s{S_W4}")
    A(f"s_lshl_b32 s{S_T0}, s{S_T0}, 3")
    A(f"s_add_u32 s{S_T0}, s{S_T0}, {HF_OFF}")
    flag_store(P, 14, "hst")
    P.stamp(2)
    if Cfg.fack: (A("s_waitcnt vmcnt(0)"), P.stamp(15))
    P.flags.add("hflag")

G3STEPS = [(p, s_) for s_ in range(5) for p in range(2)] + [(0, 5), (0, 6), (1, 5), (1, 6)] + \
          [(2, s_) for s_ in range(7)] + [(3, s_) for s_ in range(7)]
NH = 14
def h_home(n):
    k = n % NH
    return ("v", 176 + 8*k) if k < 10 else ("a", 224 + 8*(k - 10))
QA = lambda k: 32 + 16*k
ACCQ = {0: [0, 1, 2, 3], 1: [4, 5, 6, 7], 2: [8, 1, 2, 3], 3: [0, 5, 6, 7]}
DUMP = {0: 0, 1: 12288, 2: BUF, 3: 0}
def q_h(P, n):
    p, s_ = G3STEPS[n]
    k, b = h_home(n)
    items = []
    for a_ in range(2):
        def e(a_=a_):
            P.vm(f"buffer_load_dwordx4 {R(k,b+4*a_,4)}, v{V_AO+2*p+a_}, {S4(S_W)}, s{S_HS+s_} offen {Cfg.hld}", ("h", n) if a_ else None)
        items.append(dict(kind="ld", emit=e, pre=["hok"] + ([("g3", n - NH)] if n >= NH else [])))
    return items

def g3(P):
    A = P.A
    P.until("hok")
    P.D = Cfg.D3
    vo = vorder()
    side = deque()
    def S_(f): side.append(f)
    def dump(p):
        for t in (1, 2, 3):
            for i in range(4):
                S_(lambda t=t, i=i: P.ds(f"ds_write_b128 v{V_RA}, {v(QA(ACCQ[p][t])+4*i,4)} offset:{DUMP[p] + (t-1)*4096 + i*1024}", ("dump", p)))
    def bar():
        def f():
            P.dall(); A("s_barrier")
        S_(f)
    def reduce_send(p, tq):
        own = QA(ACCQ[p][0]); T = [QA(k) for k in tq]
        for t in range(3):
            for i in range(4):
                S_(lambda t=t, i=i: P.ds(f"ds_read_b128 {v(T[t]+4*i,4)}, v{V_RA+1+t} offset:{DUMP[p] + t*4096 + i*1024}", ("r3", p, t)))
        def addr():
            A(f"s_add_u32 s{S_T0}, s{S_KQ}, {1+p}")
            A(f"s_and_b32 s{S_T0}, s{S_T0}, 3")
            A(f"s_lshl2_add_u32 s{S_T0}, s{S_G3}, s{S_T0}")
            A(f"s_mul_i32 s{S_T0}, s{S_T0}, 12")
            A(f"s_add_u32 s{S_T0}, s{S_T0}, s{S_W4}")
            A(f"s_lshl_b32 s{S_T0}, s{S_T0}, 12")
            A(f"s_add_u32 s{S_OFF}, s{S_T0}, {PX_OFF + p*16384}")
        S_(addr)
        for e in range(0, 16, 4):
            S_(lambda e=e: (P.dneed(("r3", p, 0)), add2(A, own+e, own+e, T[0]+e, 4)))
        for e in range(0, 16, 4):
            S_(lambda e=e: (P.dneed(("r3", p, 2)), add2(A, T[1]+e, T[1]+e, T[2]+e, 4)))
        for i in range(4):
            def f(i=i):
                add2(A, T[1]+4*i, own+4*i, T[1]+4*i, 4)
                P.vm(f"buffer_store_dwordx4 {v(T[1]+4*i,4)}, v{V_L16}, {S4(S_W)}, s{S_OFF} offen offset:{i*1024} sc1", ("pst", p))
            S_(f)
    def pflag(p):
        def f():
            A(f"s_add_u32 s{S_T0}, s{S_KQ}, {1+p}")
            A(f"s_and_b32 s{S_T0}, s{S_T0}, 3")
            A(f"s_lshl2_add_u32 s{S_T0}, s{S_G3}, s{S_T0}")
            A(f"s_lshl2_add_u32 s{S_T0}, s{S_T0}, s{S_W4}")
            A(f"s_lshl_b32 s{S_T0}, s{S_T0}, 5")
            A(f"s_add_u32 s{S_T0}, s{S_T0}, {PF_OFF + 8*p}")
            flag_store(P, 14, ("pst", p))
        S_(f)
    def drain():
        while side: side.popleft()()
    TA = V_RA + 4
    def tsetup():
        A(f"v_bfe_u32 v14, v{V_L8}, 3, 4")
        A(f"v_lshrrev_b32 v15, 7, v{V_L8}")
        A(f"v_lshlrev_b32 v{V_QO}, 9, v15")
        A(f"v_lshl_add_u32 v{V_QO}, v14, 4, v{V_QO}")
        A(f"v_mul_u32_u24 v{V_CHK}, 7168, v14")
        A(f"v_lshl_add_u32 v{V_CHK}, v15, 4, v{V_CHK}")
        for t in range(4):
            A(f"v_sub_u32 v{TA+t}, v{V_RA+t}, v{V_L16}")
            A(f"v_add_u32 v{TA+t}, v{TA+t}, v{V_QO}")
    S_(tsetup)
    P.issue(("h", 3))
    for n, (p, s_) in enumerate(G3STEPS):
        if (p, s_) == (1, 5): dump(0)
        if (p, s_) == (2, 0):
            drain(); P.dneed(("dump", 0))
            dump(1); bar(); reduce_send(0, (5, 6, 7)); reduce_send(1, (5, 0, 7))
        if (p, s_) == (2, 6): pflag(0); pflag(1)
        if (p, s_) == (3, 0):
            drain()
            dump(2); bar(); reduce_send(2, (1, 2, 3))
        if (p, s_) == (3, 5): pflag(2)
        P.need(("h", n))
        for b in range(2):
            m = vo.index((s_, b))
            P.until(("vmoved", m)); P.dwait_idx(P.didx[("vm", m)])
        k, hb = h_home(n)
        for t in (1, 2, 3, 0):
            for i in range(4):
                mfma(A, v(QA(ACCQ[p][t])+4*i, 4), a(32*s_+16*(t & 1)+4*i, 4), R(k, hb+4*(t >> 1), 4), s_ == 0)
                if side: side.popleft()()
                else: P.pump(1, True)
        P.flags.add(("g3", n))
        if n in (0, 13, 20, 27): P.stamp(9 + (0, 13, 20, 27).index(n))
    drain()
    P.flags.add("g3done")
    for t in (1, 2, 3, 0):
        for i in range(4):
            P.ds(f"ds_write_b128 v{V_RA}, {v(QA(ACCQ[3][t])+4*i,4)} offset:{((t-1)&3)*4096 + i*1024}")
    P.until("pok")
    RX = 176
    A(f"s_lshl2_add_u32 s{S_T0}, s{S_G3}, s{S_KQ}")
    A(f"s_mul_i32 s{S_T0}, s{S_T0}, 12")
    A(f"s_add_u32 s{S_T0}, s{S_T0}, s{S_W4}")
    A(f"s_lshl_b32 s{S_T0}, s{S_T0}, 12")
    A(f"s_add_u32 s{S_OFF}, s{S_T0}, {PX_OFF}")
    for p in range(3):
        if p: A(f"s_add_u32 s{S_OFF}, s{S_OFF}, 16384")
        for s_ in range(2):
            for u in range(2):
                P.vm(f"buffer_load_dwordx4 {v(RX+16*p+8*s_+4*u,4)}, v{V_QO}, {S4(S_W)}, s{S_OFF} offen offset:{2048*s_+256*u} sc1", ("rx", p))
    A(f"s_and_b32 s{S_T0}, s{S_G3}, 1")
    A(f"s_lshl2_add_u32 s{S_T0}, s{S_T0}, s{S_KQ}")
    A(f"s_lshr_b32 s{S_T1}, s{S_W4}, 1")
    A(f"s_lshl1_add_u32 s{S_T0}, s{S_T0}, s{S_T1}")
    A(f"s_mul_i32 s{S_T0}, s{S_T0}, {16*7168}")
    A(f"s_lshr_b32 s{S_T1}, s{S_G3}, 1")
    A(f"s_lshl_b32 s{S_T1}, s{S_T1}, 8")
    A(f"s_add_u32 s{S_T0}, s{S_T0}, s{S_T1}")
    A(f"s_add_u32 s{S_OFF}, s{S_T0}, s{S_ETA}")
    P.dall()
    A("s_barrier")
    R0 = QA(1)
    for t in range(4):
        for s_ in range(2):
            for u in range(2):
                P.ds(f"ds_read_b128 {v(R0+16*t+8*s_+4*u,4)}, v{TA+t} offset:{((t-1)&3)*4096 + 2048*s_+256*u}", ("rf", t))
    P.dneed(("rf", 1)); add2(A, R0, R0, R0+16, 16)
    P.dneed(("rf", 3)); add2(A, R0+32, R0+32, R0+48, 16); add2(A, R0, R0, R0+32, 16)
    P.need(("rx", 1)); add2(A, RX, RX, RX+16, 16); add2(A, R0, R0, RX, 16)
    P.need(("rx", 2))
    for s_ in range(2):
        add2(A, R0+8*s_, R0+8*s_, RX+32+8*s_, 8)
        for q in range(4): pk(A, R0+16+4*s_+q, R0+8*s_+2*q, R0+8*s_+2*q+1)
        P.vm(f"buffer_store_dwordx4 {v(R0+16+4*s_,4)}, v{V_CHK}, {S4(S_O)}, s{S_OFF} offen offset:{64*s_} {Cfg.ost}")
    assert not P.Q, P.Q[0]

def prog_C(A):
    P = Prog(A); P.vn = 0; P.vmn = 0; P.vlast = -9
    A.label("cls_C")
    x8, slot = S_T2, S_T3
    T = WQ
    A(f"s_lshl2_add_u32 s{S_T0}, s{slot}, s{S_W4}")
    A(f"v_lshrrev_b32 v{T}, 1, v0")
    A(f"v_lshlrev_b32 v{T}, 11, v{T}")
    A(f"v_and_b32 v{T+1}, 1, v0")
    A(f"v_lshl_add_u32 v{T}, v{T+1}, 7, v{T}")
    A(f"v_lshlrev_b32 v{T+1}, 7, v0")
    A(f"s_lshl_b32 s{S_OFF}, s{S_T0}, 13")
    A(f"s_sub_u32 s{S_T1}, s{S_T0}, 64")
    A(f"s_lshl_b32 s{S_OFF2}, s{S_T1}, 16")
    A(f"s_lshl_b32 s{S_T1}, s{x8}, 8")
    A(f"s_add_u32 s{S_OFF2}, s{S_OFF2}, s{S_T1}")
    A(f"s_lshr_b32 s{S_QB}, s{slot}, 2")
    A(f"s_mul_i32 s{S_CB}, s{x8}, 7")
    A(f"s_add_u32 s{S_CB}, s{S_CB}, s{S_QB}")
    A(f"s_lshl1_add_u32 s{S_QB}, s{S_MB}, s{S_QB}")
    c, g = T + 2, T + 3
    A(f"v_and_b32 v{c}, 15, v0")
    A(f"v_lshrrev_b32 v{g}, 4, v0")
    A(f"v_mul_u32_u24 v{V_QO}, {4*14336}, v{g}")
    A(f"v_lshl_add_u32 v{V_QO}, v{c}, 4, v{V_QO}")
    A(f"s_mul_i32 s{S_KQ}, s{S_W4}, {256*14336}")
    A(f"s_lshl_b32 s{S_T1}, s{S_CB}, 8")
    A(f"s_add_u32 s{S_KQ}, s{S_KQ}, s{S_T1}")
    A(f"v_add_u32 v{V_QO}, s{S_KQ}, v{V_QO}")
    A(f"v_lshlrev_b32 v{c}, 3, v{c}")
    A("s_waitcnt lgkmcnt(0)")
    if Cfg.touch:
        A(f"s_cmp_ge_u32 s{S_T0}, 64")
        A("s_cbranch_scc1 tchU")
        srd(A, S_X, 8, 9, 256 * 1024 * 2)
        A(f"buffer_load_dword v{V_CHK+2}, v{T+1}, {S4(S_X)}, s{S_OFF} offen")
        A("s_branch tchE")
        A.label("tchU")
        A(f"s_cmp_ge_u32 s{S_T0}, 96")
        A("s_cbranch_scc1 tchE")
        srd(A, S_U, 16, 17, 1024 * 1024 * 2)
        A(f"buffer_load_dword v{V_CHK+2}, v{T}, {S4(S_U)}, s{S_OFF2} offen")
        A.label("tchE")
    srd(A, S_S, 12, 13, 3584 * 2)
    srd(A, S_Z, 14, 15, 3584 * 2)
    srd(A, S_Q, 10, 11, 1024 * 3584 * 4)
    A(f"s_lshl_b32 s{S_T0}, s{S_CB}, 7")
    P.vm(f"buffer_load_dwordx2 {v(WQ+96,2)}, v{c}, {S4(S_S)}, s{S_T0} offen")
    P.vm(f"buffer_load_dwordx2 {v(WQ+100,2)}, v{c}, {S4(S_Z)}, s{S_T0} offen", "sz")
    def xaddr():
        A(f"s_lshl2_add_u32 s{S_T1}, s{S_MB}, s{S_W4}")
        A(f"s_lshl_b32 s{S_T1}, s{S_T1}, 7")
        A(f"s_add_u32 s{S_T1}, s{S_T1}, {XF_OFF}")
    def haddr():
        A(f"s_lshl2_add_u32 s{S_T1}, s{S_KQ}, s{S_W4}")
        A(f"s_mul_i32 s{S_T1}, s{S_T1}, 7")
        A(f"s_lshr_b32 s{S_T1}, s{S_T1}, 1")
        A(f"s_bitcmp1_b32 s{S_G3}, 0")
        A(f"s_cselect_b32 s{S_T0}, 56, 0")
        A(f"s_add_u32 s{S_T1}, s{S_T1}, s{S_T0}")
        A(f"s_lshl_b32 s{S_T1}, s{S_T1}, 6")
        A(f"s_add_u32 s{S_T1}, s{S_T1}, {HF_OFF}")
    def paddr():
        A(f"s_lshl2_add_u32 s{S_T1}, s{S_G3}, s{S_KQ}")
        A(f"s_lshl2_add_u32 s{S_T1}, s{S_T1}, s{S_W4}")
        A(f"s_lshl_b32 s{S_T1}, s{S_T1}, 5")
        A(f"s_add_u32 s{S_T1}, s{S_T1}, {PF_OFF}")
    xp, xc = q_poll(P, "x", 8, xaddr, 4, ["tok"])
    hp, hc = q_poll(P, "h", 32, haddr, 6, ["hflag"])
    pp, pc = q_poll(P, "p", 3, paddr, 13, ["g3done"])
    Q = P.Q
    Q += q_qw(P, 0)
    P.pump(6)
    srd(A, S_D, 22, 23, 256)
    srd(A, S_W, 24, 25, 16 << 20)
    srd(A, S_V, 18, 19, 3584 * 3584 * 2)
    srd(A, S_O, 20, 21, 256 * 3584 * 2)
    A(f"s_or_b32 s{S_T0}, s2, s{S_W4}")
    A(f"s_cmp_lg_u32 s{S_T0}, 0")
    A("s_cbranch_scc1 notok")
    A(f"v_mov_b32 v{V_P}, s{S_TOK}")
    A(f"v_mov_b32 v{V_P+1}, s{S_TOK+1}")
    A("s_mov_b64 exec, 1")
    A(f"buffer_store_dwordx2 v[{V_P}:{V_P+1}], off, {S4(S_D)}, 0 sc1")
    A("s_mov_b64 exec, -1")
    A("s_waitcnt vmcnt(0)")
    A.label("notok")
    stamp_init2(A)
    A("s_setreg_imm32_b32 hwreg(HW_REG_MODE, 4, 2), 3")
    A(f"s_lshr_b32 s{S_KQ}, s{x8}, 1")
    A(f"s_and_b32 s{S_T0}, s{x8}, 1")
    A(f"s_mul_i32 s{S_T0}, s{S_T0}, 28")
    A(f"s_add_u32 s{S_G3}, s{S_T0}, s{slot}")
    A(f"s_xor_b32 s{S_ETA}, s{slot}, s{S_W4}")
    A(f"s_and_b32 s{S_ETA}, s{S_ETA}, 1")
    A(f"s_lshl_b32 s{S_ETA}, s{S_ETA}, 7")
    A(f"s_lshl2_add_u32 s{S_T0}, s{S_KQ}, s{S_W4}")
    A(f"s_mul_i32 s{S_T0}, s{S_T0}, 7")
    A(f"s_lshr_b32 s{S_T1}, s{slot}, 2")
    for s_ in range(7):
        if s_:
            A(f"s_add_u32 s{S_T1}, s{S_T1}, 1")
            A(f"s_cmp_ge_u32 s{S_T1}, 7")
            A(f"s_cselect_b32 s{S_T1}, 0, s{S_T1}")
        A(f"s_add_u32 s{S_HS+s_}, s{S_T0}, s{S_T1}")
        A(f"s_lshl_b32 s{S_HS+s_}, s{S_HS+s_}, 10")
    dma_chunk(A, T, T+1, T+2)
    A(f"v_and_b32 v{T}, 3, v{T}")
    A(f"v_lshrrev_b32 v{T+2}, 5, v0")
    A(f"v_lshl_add_u32 v{T}, v{T+2}, 4, v{T}")
    A(f"v_mul_u32_u24 v{T}, 7168, v{T}")
    A(f"v_add_u32 v{T}, v{T}, v{T+1}")
    A(f"s_lshr_b32 s{S_T0}, s{S_G3}, 1")
    A(f"s_lshl_b32 s{S_T0}, s{S_T0}, 8")
    A(f"v_add_u32 v{V_VD}, s{S_T0}, v{T}")
    for q in range(1, 4): A(f"v_add_u32 v{V_VD+q}, {(32*(q&1)+4*(q>>1))*7168 - q*1024}, v{V_VD}")
    tr_addrs(A, T)
    A(f"v_lshlrev_b32 v{V_L8}, 3, v0")
    P.flags.add("vset")
    Q += q_qw(P, 1) + q_tok(P) + q_qw(P, 2) + q_qw(P, 3) + q_tokchk(P)
    for p in range(4, 8): Q += q_qw(P, p)
    Q += vseq(P, Cfg.nv1 - 1) + [xp] + vseq(P, 1) + [xc] + q_xr(P)
    Q += vseq(P, Cfg.nv2)
    Q.append(dict(kind="act", emit=lambda: None, pre=["hst"]))
    Q += vseq(P, Cfg.nv3) + [hp] + vseq(P, 1) + [hc]
    for n in range(28):
        Q += q_h(P, n)
        if n % 2 == 1:
            Q += vseq(P, 1, 2)
            if P.vn == 14 and n >= P.vlast + 2: Q += vflush(P)
        if P.vn < 14: P.vlast = n
    Q += [pp, pc]
    lut_build(P)
    for p in range(8):
        dequant(P, p)
    P.stamp(3)
    g2(P)
    g3(P)

def build():
    COLD.clear()
    A = Asm()
    A.raw(f".globl {NAME}\n.p2align 8\n.type {NAME},@function\n{NAME}:")
    prologue(A)
    B = Asm(); B.uid = 1000
    prog_S(B)
    prog_C(A)
    A.label("kfin")
    stamp_flush(A)
    A("s_endpgm")
    A.raw(B.text())
    A.label("kend")
    A("s_endpgm")
    for c in COLD: A.raw(c)
    out = HEADER + "; @launch grid=(256,1,1) block=(256,1,1) lds=163840\n"
    out += '.amdgcn_target "amdgcn-amd-amdhsa--gfx950"\n.text\n'
    out += A.text()
    out += '.section .rodata,"a"\n.p2align 6\n' + kernel_desc(NAME)
    return out

if __name__ == "__main__":
    for kv in sys.argv[2:]:
        k, val = kv.split("=")
        setattr(Cfg, k, json.loads(val) if val[:1] in "0123456789[-" and val else val.replace("+", " "))
    open(sys.argv[1], "w").write(build())
```

```python
import sys, json
from collections import deque
from asmlib import *
NAME = "standalone__weight_only_int_quip__sampling_kernel"

S_X, S_Q, S_S, S_Z, S_U, S_V, S_O, S_W, S_D, S_ST = 28, 32, 36, 40, 44, 48, 52, 56, 60, 64
S_W4, S_MB, S_QB, S_CB, S_TOK = 68, 69, 70, 71, 72
S_HS = 74
S_RING, S_T0, S_T1, S_T2, S_T3 = 81, 82, 83, 84, 85
S_OFF, S_OFF2 = 26, 27
S_KQ, S_G3, S_ETA, S_PS0, S_PS1 = 3, 4, 5, 6, 7
S_STB = 86
XR_OFF, H_OFF = 0, 1 << 20
PK_OFF = 20 << 20
S_PAT, S_PKB, S_MSK = 44, 0, 1
XF_OFF, HF_OFF, PF_OFF, PX_OFF = 3 << 20, (3 << 20) + 4096, (3 << 20) + 16384, 4 << 20
V_L8, V_L16, V_P = 0, 1, 2
V_VD, V_TR, V_QO, V_CHK = 4, 8, 12, 13
LUT, RAW, WQ = 16, 32, 128
V_AO, V_RA = 16, 24
WREG = 40960
BUF = 24576
SPIN = 30000

class Cfg:
    stamps = False
    D = 8
    D3 = 28
    DS = 12
    qord = ((0, 0), (0, 1), (1, 0), (2, 0), (3, 0), (1, 1), (2, 1), (3, 1))
    vlag = 3
    seq1 = "htqTVFVVqqqRVqqqVCXfrWWWWHVVVVcG"
    seq2 = ""
    vlag2 = -1
    cbit = 0
    sl = 3
    spz = 5
    sbud = 2
    emu = 0
    pspin = 12
    spipe = 1
    smap = 1
    sslack = 6
    DS2 = 12
    sdw = 0
    D2 = 16
    vpos = 0
    tlb = 0
    ff = 0
    vrow = 0
    xpz = "S"
    pzw = 4
    schk = 14
    xspec = 2
    hspec = 4
    side = 1
    rx01 = 5
    hld = "sc1"
    ost = "sc1"
    vm = ""
    vh = ""
    qm = "nt"
    qh = ""
    skip = ""
    touch = 1
    stok = 10
    vml = 3
    dwsp = [1, 1, 0]
    bud = [2, 2, 4]
    barw = 3
    fine = -1
    nock = 0
    g1pre = 7
    spf = 0

SFX = [""]
def sreg(k): return S_STB + 2*k if k < 8 else 8 + 2*(k - 8)
def S4(d): return f"s[{d}:{d+3}]"
class Prog:
    def __init__(self, A):
        self.A = A
        self.nvm = 0; self.done = 0; self.idx = {}; self.lds = []
        self.nds = 0; self.ddone = 0; self.didx = {}
        self.flags = set(); self.Q = deque(); self.D = Cfg.D; self.g3 = False; self.isS = False
    def vm(self, text, tag=None):
        sk = False
        if "V" in Cfg.skip and S4(S_V) in text: sk = True
        if "H" in Cfg.skip and S4(S_W) in text and "load_dwordx4" in text: sk = True
        if "Q" in Cfg.skip and S4(S_Q) in text: sk = True
        if "P" in Cfg.skip and isinstance(tag, tuple) and tag[0] == "pst": sk = True
        if "h" in Cfg.skip and self.g3 and S4(S_W) in text and "load_dword" in text: sk = True
        if sk:
            if tag is not None: self.idx[tag] = self.nvm - 1
            return
        self.A(text)
        if tag is not None: self.idx[tag] = self.nvm
        if "_load_" in text: self.lds.append(self.nvm)
        self.nvm += 1
    def wait_idx(self, i):
        if i < self.done: return
        n = min(self.nvm - 1 - i, 63)
        self.A(f"s_waitcnt vmcnt({n})")
        self.done = self.nvm - n
    def ds(self, text, tag=None):
        if "L" in Cfg.skip and self.g3 and isinstance(tag, tuple) and tag[0] in ("dump", "r3") and tag[1] < 3:
            self.didx[tag] = self.nds - 1
            return
        self.A(text)
        if tag is not None: self.didx[tag] = self.nds
        self.nds += 1
    def dwait_idx(self, i):
        if i < self.ddone: return
        n = min(self.nds - 1 - i, 15)
        self.A(f"s_waitcnt lgkmcnt({n})")
        self.ddone = self.nds - n
    def dall(self): self.dwait_idx(self.nds - 1)
    def wneed(self, it):
        if it["kind"] == "gate": return self.nvm
        if it["kind"] == "ld": return max(self.lds[-self.D] if len(self.lds) >= self.D else -1, self.nvm - 60)
        return self.idx[it["waits"]] if "waits" in it else -1
    def step(self, nb=False):
        if not self.Q: return None
        it = self.Q[0]
        if any(p not in self.flags for p in it.get("pre", ())): return None
        if nb and self.wneed(it) >= self.done: return None
        self.Q.popleft()
        if it["kind"] == "ld" and self.wneed(it) >= 0: self.wait_idx(self.wneed(it))
        it["emit"]()
        return it["kind"]
    def pump(self, n=1, nb=False):
        while n > 0:
            if self.step(nb) is None: return
            n -= 1
    def issue(self, tag, tab=None):
        tab = self.idx if tab is None else tab
        while tag not in tab:
            k = self.step()
            assert k is not None, f"deadlock waiting {tag}; head={self.Q[0] if self.Q else None} flags={sorted(map(str,self.flags))}"
    def need(self, tag, fill=True):
        self.issue(tag)
        while fill and self.idx[tag] >= self.done and self.Q:
            if self.wneed(self.Q[0]) > self.idx[tag]: break
            if self.step() is None: break
        self.wait_idx(self.idx[tag])
    def dneed(self, tag):
        self.issue(tag, self.didx); self.dwait_idx(self.didx[tag])
    def until(self, flag):
        while flag not in self.flags:
            k = self.step()
            assert k is not None, f"deadlock until {flag}; head={self.Q[0] if self.Q else None}"
    def stamp(self, k, fine=False):
        if Cfg.fine >= 0 and k >= 8 and not fine and not self.isS: return
        if Cfg.ff and 9 <= k <= 13 and self.g3: return
        if Cfg.stamps: self.A(f"s_memrealtime s[{sreg(k)}:{sreg(k)+1}]")

def srd(A, d, lo, hi, nbytes, add=0):
    if add:
        A(f"s_add_u32 s{d}, s{lo}, {add}")
        A(f"s_addc_u32 s{d+1}, s{hi}, 0")
    else:
        A(f"s_mov_b64 s[{d}:{d+1}], s[{lo}:{hi}]")
    A(f"s_mov_b32 s{d+2}, {nbytes}")
    A(f"s_mov_b32 s{d+3}, 0x20000")
def pk(A, d, lo, hi): A(f"v_cvt_pk_bf16_f32 v{d}, v{lo}, v{hi}")
def add2(A, d, x, y, n):
    for e in range(0, n, 2): A(f"v_pk_add_f32 {v(d+e,2)}, {v(x+e,2)}, {v(y+e,2)}")
def mfma(A, d, a_, b_, first): A(f"v_mfma_f32_16x16x32_bf16 {d}, {a_}, {b_}, {'0' if first else d}")

def stamp_flush(A, n=16):
    if not Cfg.stamps: return
    A("s_waitcnt vmcnt(0)")
    A(f"s_memrealtime s[{S_STB+14}:{S_STB+15}]")
    A("s_waitcnt lgkmcnt(0)")
    srd(A, S_ST, 24, 25, 1 << 20, 128 << 20)
    A(f"s_lshl_b32 s{S_T0}, s2, 2")
    A(f"s_add_u32 s{S_T0}, s{S_T0}, s{S_W4}")
    A(f"s_lshl_b32 s{S_T0}, s{S_T0}, 8")
    A("v_mov_b32 v4, 0")
    A("s_mov_b64 exec, 1")
    for k in range(n):
        A(f"v_mov_b32 v6, s{sreg(k)}")
        A(f"v_mov_b32 v7, s{sreg(k)+1}")
        A(f"buffer_store_dwordx2 v[6:7], v4, {S4(S_ST)}, s{S_T0} offen offset:{k*8}")
        A("s_nop 1")

def stamp_init2(A):
    if Cfg.stamps:
        A(f"s_memrealtime s[{S_STB+2}:{S_STB+3}]")
        for k in range(8, 16): A(f"s_mov_b64 s[{sreg(k)}:{sreg(k)+1}], 0")

def dma_chunk(A, row, ch, t):
    A(f"v_lshrrev_b32 v{row}, 3, v0")
    A(f"v_and_b32 v{ch}, 6, v{row}")
    A(f"v_and_b32 v{t}, 7, v0")
    A(f"v_xor_b32 v{ch}, v{ch}, v{t}")
    A(f"v_lshlrev_b32 v{ch}, 4, v{ch}")
def tr_addrs(A, t, perm=False):
    A(f"v_lshrrev_b32 v{t}, 2, v0")
    A(f"v_and_b32 v{t+1}, 6, v{t}")
    if perm:
        A(f"v_and_b32 v{t+2}, 3, v0")
        A(f"v_xor_b32 v{t+1}, v{t+1}, v{t+2}")
        A(f"v_lshlrev_b32 v{t+1}, 4, v{t+1}")
        A(f"v_lshl_add_u32 v{V_TR}, v{t}, 7, v{t+1}")
        for i in range(1, 4): A(f"v_xor_b32 v{V_TR+i}, {64*(i>>1) + 8*(i&1)}, v{V_TR}")
        for i in range(4): A(f"v_add_u32 v{V_TR+i}, s{S_RING}, v{V_TR+i}")
        return
    A(f"v_bfe_u32 v{t+2}, v0, 1, 1")
    A(f"v_or_b32 v{t+1}, v{t+1}, v{t+2}")
    A(f"v_lshlrev_b32 v{t+1}, 4, v{t+1}")
    A(f"v_lshl_add_u32 v{t+1}, v{t}, 7, v{t+1}")
    A(f"v_and_b32 v{t+2}, 1, v0")
    A(f"v_lshl_add_u32 v{V_TR}, v{t+2}, 3, v{t+1}")
    for i in range(1, 4): A(f"v_xor_b32 v{V_TR+i}, {32*i}, v{V_TR}")
    for i in range(4): A(f"v_add_u32 v{V_TR+i}, s{S_RING}, v{V_TR+i}")

def prologue(A):
    A("s_cmp_ge_u32 s2, 256")
    A("s_cbranch_scc1 kend")
    A("s_load_dwordx16 s[8:23], s[0:1], 0")
    A("s_load_dwordx2 s[24:25], s[0:1], 64")
    if Cfg.stamps:
        A(f"s_memrealtime s[{S_STB}:{S_STB+1}]")
        for k in range(1, 8): A(f"s_mov_b64 s[{S_STB+2*k}:{S_STB+2*k+1}], 0")
    A(f"s_memrealtime s[{S_TOK}:{S_TOK+1}]")
    A(f"s_getpc_b64 s[{S_ST}:{S_ST+1}]")
    A.label("pcbase")
    A(f"s_mov_b32 s{S_ST+2}, kend-pcbase")
    A(f"s_mov_b32 s{S_ST+3}, 0x20000")
    A(f"s_lshr_b32 s{S_T3}, s2, 3")
    A(f"s_mul_i32 s{S_T0}, s{S_T3}, ((kend-pcbase+4095)/4096)*128")
    A("v_lshlrev_b32 v254, 7, v0")
    A("v_cmp_gt_u32 vcc, (kend-pcbase+4095)/4096, v0")
    A("s_and_saveexec_b64 s[6:7], vcc")
    A("s_cbranch_execz pfskip")
    A(f"buffer_load_dword v255, v254, {S4(S_ST)}, s{S_T0} offen")
    A.label("pfskip")
    A("s_mov_b64 exec, -1")
    A("v_lshrrev_b32 v1, 6, v0")
    A("v_and_b32 v0, 63, v0")
    A(f"v_readfirstlane_b32 s{S_W4}, v1")
    A(f"s_and_b32 s{S_T2}, s2, 7")
    A(f"s_and_b32 s{S_MB}, s{S_T3}, 3")
    A(f"s_mul_i32 s{S_RING}, s{S_W4}, {WREG}")
    A(f"v_lshlrev_b32 v{V_L16}, 4, v0")
    A(f"s_cmp_ge_u32 s{S_T3}, 28")
    A("s_cbranch_scc1 cls_S")
    if Cfg.seq2:
        A(f"s_bitcmp1_b32 s{S_T3}, {Cfg.cbit}")
        A("s_cbranch_scc1 cls_Cb")

def q_tok(P):
    def e(): P.vm(f"buffer_load_dwordx2 v[{V_P}:{V_P+1}], off, {S4(S_D)}, 0 sc1", "tok")
    return [dict(kind="ld", emit=e)]
def q_tokchk(P, pat=False):
    A = P.A
    def e():
        P.wait_idx(P.idx["tok"])
        l = A.newlabel("tokl"); o = A.newlabel("toko")
        A(f"s_mov_b32 s{S_T3}, {SPIN}")
        A.label(l)
        A(f"v_readfirstlane_b32 s{S_TOK}, v{V_P}")
        A(f"v_readfirstlane_b32 s{S_TOK+1}, v{V_P+1}")
        A(f"s_cmp_lg_u64 s[{S_TOK}:{S_TOK+1}], 0")
        A(f"s_cbranch_scc1 {o}")
        A(f"s_sub_u32 s{S_T3}, s{S_T3}, 1")
        A(f"s_cbranch_scc1 {o}")
        A(f"buffer_load_dwordx2 v[{V_P}:{V_P+1}], off, {S4(S_D)}, 0 sc1")
        A("s_waitcnt vmcnt(0)")
        A(f"s_branch {l}")
        A.label(o)
        if pat:
            A(f"s_mov_b32 s{S_MSK}, 0xf8f8f8f8")
            for k in range(2):
                A(f"s_and_b32 s{S_PAT+2*k}, s{S_TOK+k}, s{S_MSK}")
                A(f"s_lshl_b32 s{S_PAT+2*k+1}, s{S_TOK+k}, 3")
                A(f"s_and_b32 s{S_PAT+2*k+1}, s{S_PAT+2*k+1}, s{S_MSK}")
        P.flags.add("tok")
    return [dict(kind="act", emit=e, waits="tok")]

COLD = []
def chk_code(A, regs):
    src = []; tmp = [14, 15]; out = 13
    def red(x):
        A(f"v_max3_u32 v{out}, v{x[0]}, v{x[1]}, v{x[2]}" if len(x) == 3 else f"v_max_u32 v{out}, v{x[0]}, v{x[1]}")
    cur = []
    for k, r in regs:
        if k == "a":
            t = [q for q in (14, 15, 13) if q not in cur][0]
            A(f"v_accvgpr_read_b32 v{t}, a{r}"); r = t
        cur.append(r)
        if len(cur) == 3: red(cur); cur = [out]
    if len(cur) == 2: red(cur); cur = [out]
    A(f"v_cmp_eq_u32 vcc, -1, v{cur[0]}")
WARM = []
def check(P, regs, reload, inline=False, sd=None):
    A = P.A
    l = A.newlabel("ck")
    if Cfg.nock: return
    if inline:
        A(f"s_mov_b32 s{S_T3}, {SPIN}")
        A.label(l + "l")
        chk_code(A, regs)
        A(f"s_cbranch_vccz {l}r")
        for t in reload: A(t)
        A(f"s_sub_u32 s{S_T3}, s{S_T3}, 1")
        A("s_waitcnt vmcnt(0)")
        A(f"s_cbranch_scc0 {l}l")
        A.label(l + "r")
        return
    if sd:
        rec = Rec(); chk_code(rec, regs)
        for t in rec.l: sd.hi.append(lambda t=t: A(t))
        sd.hi.append(lambda: (A(f"s_cbranch_vccnz {l}s"), A.label(l + "r")))
    else:
        chk_code(A, regs)
        A(f"s_cbranch_vccnz {l}s")
        A.label(l + "r")
    C = Asm()
    C.label(l + "s")
    C(f"s_mov_b32 s{S_T3}, {SPIN}")
    C.label(l + "l")
    for t in reload: C(t)
    C("s_waitcnt vmcnt(0)")
    chk_code(C, regs)
    C(f"s_cbranch_vccz {l}r")
    C(f"s_sub_u32 s{S_T3}, s{S_T3}, 1")
    C(f"s_cbranch_scc0 {l}l")
    C(f"s_branch {l}r")
    WARM.append(C.text())
def q_gate(P, name, probe, spec, pre, st=None, setup=None):
    A = P.A
    def e():
        if setup: setup()
        l = A.newlabel("gt")
        A(f"s_mov_b32 s{S_T3}, {SPIN}")
        A.label(l)
        P.vm(probe, name + "probe")
        for pt, t, tag in spec:
            if pt: A(pt)
            P.vm(t, tag)
        P.wait_idx(P.idx[name + "probe"])
        A(f"v_cmp_eq_u32 vcc, -1, v{V_P}")
        A(f"s_cbranch_vccz {l}o")
        A(f"s_sub_u32 s{S_T3}, s{S_T3}, 1")
        A(f"s_cbranch_scc0 {l}")
        A.label(l + "o")
        P.flags.add(name + "ok")
        if st is not None: P.stamp(st)
    return dict(kind="gate", emit=e, pre=list(pre))
class Side:
    def __init__(self, P): self.q = deque(); self.hi = deque(); self.skip = 0; self.P = P
    def add(self, fn, cost=1): self.q.append((cost, fn))
    def wait(self, n): self.q.append((-n, None))
    def addf(self, d, x, y):
        if "A" in Cfg.skip and self.P.g3: return
        self.add(lambda: self.P.A(f"v_add_f32 v{d}, v{x}, v{y}"))
    def gap(self, budget=2):
        b0 = budget
        while budget > b0 - 2 and self.hi:
            self.hi.popleft()(); budget -= 1
        if self.skip: self.skip -= 1
        else:
            while self.q:
                c, f = self.q[0]
                if c < 0:
                    self.q.popleft(); self.skip = -c; break
                if c > budget: break
                self.q.popleft(); f(); budget -= c
        if budget == b0: self.P.pump(1, True)
    def drain_hi(self):
        while self.hi: self.hi.popleft()()
    def drain(self):
        self.drain_hi(); self.skip = 0
        while self.q:
            c, f = self.q.popleft()
            if c >= 0: f()
class Rec:
    def __init__(self): self.l = []
    def __call__(self, t): self.l.append(t)
def unpoison(A, r): A(f"v_min_u32 v{r}, -2, v{r}")

def flag_store(P, tv, waittag):
    A = P.A
    A(f"v_mov_b32 v{tv}, s{S_TOK}")
    A(f"v_mov_b32 v{tv+1}, s{S_TOK+1}")
    A("s_mov_b64 exec, 1")
    P.wait_idx(P.idx[waittag])
    P.vm(f"buffer_store_dwordx2 v[{tv}:{tv+1}], off, {S4(S_W)}, s{S_T0} sc1")
    A("s_mov_b64 exec, -1")

def red_addrs(A, ra):
    A(f"v_add_u32 v{ra}, s{S_RING}, v{V_L16}")
    for t in range(1, 4):
        A(f"s_xor_b32 s{S_T0}, s{S_W4}, {t}")
        A(f"s_mul_i32 s{S_T0}, s{S_T0}, {WREG}")
        A(f"v_add_u32 v{ra+t}, s{S_T0}, v{V_L16}")

def prog_S(A):
    P = Prog(A); P.D = Cfg.DS; P.isS = True
    A.label("cls_S")
    UD, XA, RA, T, ACC, RED, PZ = 4, 16, 24, 28, 128, 32, 124
    S_XB, S_UB, S_X8, S_XO, S_ROT = 3, 4, 5, 6, 7
    A(f"s_mov_b32 s{S_ROT}, s{S_MB}")
    if Cfg.smap == 0: A(f"s_mov_b32 s{S_X8}, s{S_T2}")
    elif Cfg.smap == 1:
        A(f"s_and_b32 s{S_X8}, s{S_T2}, 6")
        A(f"s_lshr_b32 s{S_T0}, s{S_ROT}, 1")
        A(f"s_add_u32 s{S_X8}, s{S_X8}, s{S_T0}")
        A(f"s_and_b32 s{S_T0}, s{S_T2}, 1")
        A(f"s_and_b32 s{S_MB}, s{S_ROT}, 1")
        A(f"s_lshl1_add_u32 s{S_MB}, s{S_T0}, s{S_MB}")
    else:
        A(f"s_and_b32 s{S_X8}, s{S_T2}, 4")
        A(f"s_add_u32 s{S_X8}, s{S_X8}, s{S_ROT}")
        A(f"s_and_b32 s{S_MB}, s{S_T2}, 3")
    dma_chunk(A, T, T+1, T+2)
    A(f"v_lshl_add_u32 v{UD}, v{T}, 11, v{T+1}")
    for q in range(1, 4): A(f"v_add_u32 v{UD+q}, {q*(8*2048-1024)}, v{UD}")
    A(f"s_lshr_b32 s{S_T0}, s{S_W4}, 1")
    A(f"s_lshl1_add_u32 s{S_T0}, s{S_MB}, s{S_T0}")
    A(f"s_lshl_b32 s{S_XB}, s{S_T0}, 16")
    A(f"s_lshl_b32 s{S_T0}, s{S_W4}, 9")
    A(f"s_add_u32 s{S_XB}, s{S_XB}, s{S_T0}")
    A(f"s_lshl_b32 s{S_UB}, s{S_W4}, 19")
    A(f"s_lshl_b32 s{S_T0}, s{S_X8}, 8")
    A(f"s_add_u32 s{S_UB}, s{S_UB}, s{S_T0}")
    for q in range(4): A(f"v_mov_b32 v{PZ+q}, -1")
    A(f"s_lshl2_add_u32 s{S_T0}, s{S_MB}, s{S_W4}")
    A(f"s_lshl_b32 s{S_T0}, s{S_T0}, 3")
    A(f"s_add_u32 s{S_T0}, s{S_T0}, s{S_X8}")
    A(f"s_lshl_b32 s{S_XO}, s{S_T0}, 12")
    A("s_waitcnt lgkmcnt(0)")
    srd(A, S_X, 8, 9, 256 * 1024 * 2)
    srd(A, S_U, 16, 17, 1024 * 1024 * 2)
    units = []
    L = Cfg.sl
    for gq in range(4 - L): units += [("u", gq, 0, 0), ("x", gq, 0, 0), ("x", gq, 1, 0), ("u", gq, 0, 1), ("u", gq, 1, 0), ("u", gq, 1, 1)]
    for gq in range(4 - L, 4): units += [("u", gq, 0, 0), ("x", gq, 0, 0), ("x", gq, 1, 0), ("u", gq, 1, 0)]
    for gq in range(4 - L, 4): units += [("u", gq, 0, 1), ("u", gq, 1, 1)]
    lastb0 = units.index(("u", 3, 1, 0))
    xun = lambda gq: units.index(("x", gq, 1, 0))
    NR = 7; DMP = {0: NR * 4096, 1: 0}
    uix = {}
    for n, u in enumerate(units):
        if u[0] == "u": uix[n] = len(uix)
    def home(n):
        k, gq, f, b = units[n]
        return 16 * (2*gq + f) if k == "x" else 128 + 16 * (uix[n] % 8)
    def dma(n):
        k, gq, f, b = units[n]
        items = []
        for q in range(4):
            def e(q=q):
                if q == 0:
                    if n >= NR: P.dwait_idx(P.didx[("rd", n - NR)])
                    A(f"s_add_u32 s{S_T0}, s{S_ROT}, {gq}")
                    A(f"s_and_b32 s{S_T0}, s{S_T0}, 3")
                    if k == "x":
                        A(f"s_lshl_b32 s{S_T0}, s{S_T0}, 7")
                        A(f"s_add_u32 s{S_OFF}, s{S_T0}, s{S_XB}")
                        if f: A(f"s_xor_b32 s{S_OFF}, s{S_OFF}, 65536")
                    else:
                        A(f"s_lshl_b32 s{S_T0}, s{S_T0}, 17")
                        A(f"s_add_u32 s{S_OFF}, s{S_T0}, s{S_UB}")
                        if f or b: A(f"s_add_u32 s{S_OFF}, s{S_OFF}, {f*65536 + b*128}")
                    A(f"s_add_u32 m0, s{S_RING}, {(n%NR)*4096}")
                    A("s_nop 0")
                P.vm(f"buffer_load_dwordx4 v{UD+q}, {S4(S_X if k=='x' else S_U)}, s{S_OFF} offen offset:{q*1024} lds", ("un", n) if q == 3 else None)
            items.append(dict(kind="ld", emit=e, pre=([("rd", n - NR)] if n >= NR else [])))
        return items
    sp, sc = q_rpoll(P, "s")
    def rflag():
        A(f"s_lshr_b32 s{S_T0}, s{S_X8}, 1")
        A(f"s_lshl2_add_u32 s{S_T0}, s{S_MB}, s{S_T0}")
        A(f"s_lshl_b32 s{S_T0}, s{S_T0}, 7")
        A(f"s_and_b32 s{S_T1}, s{S_X8}, 1")
        A(f"s_lshl2_add_u32 s{S_T1}, s{S_T1}, s{S_W4}")
        A(f"s_lshl3_add_u32 s{S_T0}, s{S_T1}, s{S_T0}")
        A(f"s_add_u32 s{S_T0}, s{S_T0}, {XF_OFF}")
        flag_store(P, T, "pz")
        P.flags.add("roks")
    if Cfg.xpz == "S":
        srd(A, S_W, 24, 25, 32 << 20)
        for q in range(4): P.vm(f"buffer_store_dword{'x4' if Cfg.pzw == 4 else ''} {v(PZ,Cfg.pzw)}, v{V_L16}, {S4(S_W)}, s{S_XO} offen offset:{q*1024} sc1", "pz")
    for n in range(24):
        P.Q += dma(n)
        if n == Cfg.stok: P.Q += q_tok(P)
        if n == Cfg.stok + 3: P.Q += q_tokchk(P)
        if Cfg.xpz == "S":
            if n == Cfg.stok + 3: P.Q.append(dict(kind="act", emit=rflag, waits="pz"))
        else:
            if n == Cfg.schk: P.Q += sp
            if n == Cfg.schk + 3: P.Q += sc
    P.pump(12)
    if Cfg.xpz != "S": srd(A, S_W, 24, 25, 32 << 20)
    P.pump(Cfg.DS - 12)
    srd(A, S_D, 22, 23, 256)
    srd(A, S_V, 18, 19, 3584 * 3584 * 2)
    stamp_init2(A)
    tr_addrs(A, T)
    c, g = T, T + 1
    A(f"v_and_b32 v{c}, 15, v0")
    A(f"v_lshrrev_b32 v{g}, 4, v0")
    A(f"v_lshlrev_b32 v{XA}, 7, v{c}")
    A(f"v_and_b32 v{T+2}, 6, v{c}")
    A(f"v_lshrrev_b32 v{T+3}, 1, v{g}")
    A(f"v_or_b32 v{T+2}, v{T+2}, v{T+3}")
    A(f"v_lshl_add_u32 v{XA}, v{T+2}, 4, v{XA}")
    A(f"v_and_b32 v{T+2}, 1, v{g}")
    A(f"v_lshl_add_u32 v{XA}, v{T+2}, 3, v{XA}")
    A(f"s_and_b32 s{S_T0}, s{S_W4}, 1")
    A(f"s_lshl_b32 s{S_T0}, s{S_T0}, 11")
    A(f"v_xor_b32 v{XA}, s{S_T0}, v{XA}")
    for k in range(1, 8): A(f"v_xor_b32 v{XA+k}, {32*(k&3) + 2048*(k>>2)}, v{XA}")
    for k in range(8): A(f"v_add_u32 v{XA+k}, s{S_RING}, v{XA+k}")
    red_addrs(A, RA)
    A(f"v_lshlrev_b32 v{V_L8}, 3, v0")
    sd = Side(P)
    def rd(n):
        k, gq, f, b = units[n]
        P.need(("un", n))
        base = home(n); lo = (n % NR) * 4096
        if k == "u":
            for i in range(4):
                for hf in range(2):
                    P.ds(f"ds_read_b64_tr_b16 {a(base+4*i+2*hf,2)}, v{V_TR+i} offset:{lo + hf*2048}", ("rd", n))
        else:
            for ff in range(2):
                for tt in range(2):
                    for h in range(2):
                        P.ds(f"ds_read_b64 {a(base+8*ff+4*tt+2*h,2)}, v{XA+4*tt+2*ff+h} offset:{lo}", ("rd", n))
        P.flags.add(("rd", n))
    def mm(n):
        k, gq, f, b = units[n]
        P.dneed(("rd", n))
        P.dneed(("rd", xun(gq)))
        for t in (1, 2, 3, 0):
            xb = 16 * (2*gq + (t >> 1)) + 8*f + 4*(t & 1)
            for i in range(4):
                d = v(ACC + 32*t + 16*b + 4*i, 4)
                mfma(A, d, a(home(n) + 4*i, 4), a(xb, 4), gq == 0 and f == 0)
                if n == 23 and t == 3 and i == 0: reduce(1)
                sd.gap(Cfg.sbud)
    def reduce(b):
        r = RED + 48*b
        for t in (1, 2, 3):
            for i in range(4):
                sd.add(lambda t=t, i=i: P.ds(f"ds_write_b128 v{RA}, {v(ACC+32*t+16*b+4*i,4)} offset:{DMP[b] + (t-1)*4096 + i*1024}", ("d1", b)), 2)
                if Cfg.sdw and not b: sd.wait(Cfg.sdw)
        sd.wait(3)
        sd.add(lambda: (P.dneed(("d1", b)), A("s_barrier")), 2)
        for t in (1, 2, 3):
            for i in range(4):
                sd.add(lambda t=t, i=i: P.ds(f"ds_read_b128 {v(r+16*(t-1)+4*i,4)}, v{RA+t} offset:{DMP[b] + (t-1)*4096 + i*1024}", ("r1", b, t)), 2)
        def adds(d, x, y, n):
            if b: sd.add(lambda: add2(A, d, x, y, n))
            else:
                for e in range(n): sd.addf(d+e, x+e, y+e)
        sd.add(lambda: P.dneed(("r1", b, 1)))
        adds(r, r, ACC+16*b, 16)
        sd.add(lambda: P.dneed(("r1", b, 3)))
        for f in range(2):
            adds(r+16+8*f, r+16+8*f, r+32+8*f, 8)
            adds(r+8*f, r+8*f, r+16+8*f, 8)
            for q in range(4): sd.add(lambda q=q, f=f: pk(A, r+16+8*f+q, r+8*f+2*q, r+8*f+2*q+1))
            sd.add(lambda f=f: unpoison(A, r+16+8*f))
            def st(f=f):
                P.until("roks")
                while P.Q: assert P.step() is not None
                P.vm(f"buffer_store_dwordx4 {v(r+16+8*f,4)}, v{V_L16}, {S4(S_W)}, s{S_XO} offen offset:{(2*b+f)*1024} sc1", "xst")
                if f: P.stamp(3 + b)
            sd.add(st, 2)
    def rd_ops(n):
        k, gq, f, b = units[n]
        base = home(n); lo = (n % NR) * 4096
        if k == "u": L = [f"ds_read_b64_tr_b16 {a(base+4*i+2*hf,2)}, v{V_TR+i} offset:{lo + hf*2048}" for i in range(4) for hf in range(2)]
        else: L = [f"ds_read_b64 {a(base+8*ff+4*tt+2*h,2)}, v{XA+4*tt+2*ff+h} offset:{lo}" for ff in range(2) for tt in range(2) for h in range(2)]
        def op(j):
            if j == 0:
                P.need(("un", n), False)
                if n in (0, 7, 15, 23): P.stamp(8 + (0, 7, 15, 23).index(n))
            P.ds(L[j], ("rd", n))
            if j == 7: P.flags.add(("rd", n))
        return [lambda j=j: op(j) for j in range(8)]
    if Cfg.spipe:
        UL = [n for n in range(24) if units[n][0] == "u"]
        last = lambda n: max(n, xun(units[n][1]))
        hi = deque(); nxt = 0
        def sgap(bud, rem):
            go = 2 * rem <= len(hi) + Cfg.sslack or len(hi) % 8
            if hi and go: hi.popleft()(); bud -= 1
            if P.step(True) is not None: bud -= 1
            if hi and go: hi.popleft()(); bud -= 1
            if sd.skip: sd.skip -= 1; return
            while sd.q and bud > 0:
                c, f = sd.q[0]
                if c < 0: sd.q.popleft(); sd.skip = -c; break
                sd.q.popleft(); f(); bud -= c
        def drain():
            while hi:
                hi.popleft()(); P.step(True)
        for j, n in enumerate(UL):
            while nxt <= last(n):
                hi.extend(rd_ops(nxt)); nxt += 1
            drain()
            if j + 1 < len(UL):
                while nxt <= last(UL[j + 1]):
                    hi.extend(rd_ops(nxt)); nxt += 1
            k, gq, f, b = units[n]
            P.dneed(("rd", last(n)))
            for t in (1, 2, 3, 0):
                xb = 16 * (2*gq + (t >> 1)) + 8*f + 4*(t & 1)
                for i in range(4):
                    mfma(A, v(ACC + 32*t + 16*b + 4*i, 4), a(home(n) + 4*i, 4), a(xb, 4), gq == 0 and f == 0)
                    if n in (23, lastb0) and t == 3 and i == 0:
                        reduce(b)
                        P.D = Cfg.DS2
                    sgap(2 if n in (23, lastb0) else Cfg.sbud, 16 - 4*((t - 1) & 3) - i)
    else:
        pend = []
        for n in range(24):
            rd(n)
            if n in (0, 7, 15, 23): P.stamp(8 + (0, 7, 15, 23).index(n))
            if units[n][0] == "u": pend.append(n)
            while len(pend) > 1 and ("rd", xun(units[pend[0]][1])) in P.flags:
                m = pend.pop(0)
                mm(m)
                if m == lastb0: reduce(0)
        assert pend == [23]
        mm(23)
    P.stamp(2)
    sd.drain()
    assert not P.Q
    A("s_branch kfin")

S_XJ, S_XB4 = 64, 28
V_RF, V_OUT = WQ + 116, 28
PXW = 5632
PZ = 220
def pk_loads(p):
    du, b = Cfg.qord[p]
    W = WQ + 16*p
    return [f"s_lshl2_add_u32 s{S_T0}, s{S_XJ+du}, s{S_PKB}"] + \
           [f"buffer_load_dwordx4 {v(W+8+4*k,4)}, v{V_L16}, {S4(S_W)}, s{S_T0} offen offset:{2048*b+1024*k} sc1" for k in range(2)]
def q_qw(P, p):
    A = P.A
    items = []
    du, b = Cfg.qord[p]
    if du:
        L = pk_loads(p)
        for k in range(2):
            items.append(dict(kind="ld", emit=lambda k=k: (A(L[0]), P.vm(L[1+k], ("q", p) if k else None)), pre=["lut"]))
        return items
    assert p < 2
    for j in range(8):
        def e(j=j):
            if j == 0:
                A(f"s_mul_i32 s{S_OFF}, s{S_XJ+du}, 448")
                if b: A(f"s_add_u32 s{S_OFF}, s{S_OFF}, {64*14336}")
            else:
                A(f"s_add_u32 s{S_OFF}, s{S_OFF}, {(13 if j == 4 else 1)*14336}")
            P.vm(f"buffer_load_dwordx4 {v(RAW+32*p+4*j,4)}, v{V_QO}, {S4(S_Q)}, s{S_OFF} offen {Cfg.qm}", ("q", p) if j == 7 else None)
        items.append(dict(kind="ld", emit=e))
    return items

def h_off(A, d):
    A(f"s_lshl2_add_u32 s{d}, s{S_MB}, s{S_W4}")
    A(f"s_mul_i32 s{d}, s{d}, 56")
    A(f"s_add_u32 s{d}, s{d}, s{S_CB}")
    A(f"s_lshl_b32 s{d}, s{d}, 11")
    A(f"s_add_u32 s{d}, s{d}, {H_OFF}")
def px_off(A, d, p, send):
    if send:
        A(f"s_add_u32 s{d}, s{S_KQ}, {1+p}")
        A(f"s_and_b32 s{d}, s{d}, 3")
        A(f"s_lshl2_add_u32 s{d}, s{S_G3}, s{d}")
    else:
        A(f"s_lshl2_add_u32 s{d}, s{S_G3}, s{S_KQ}")
    A(f"s_mul_i32 s{d}, s{d}, 12")
    A(f"s_add_u32 s{d}, s{d}, s{S_W4}")
    A(f"s_mul_i32 s{d}, s{d}, {PXW}")
    A(f"s_add_u32 s{d}, s{d}, {PX_OFF + p*4*PXW}")
def fi_idx(A, d):
    A(f"s_lshr_b32 s{d}, s{S_MB}, 1")
    A(f"s_mul_i32 s{d}, s{d}, 56")
    A(f"s_add_u32 s{d}, s{d}, s{S_CB}")
    A(f"s_and_b32 s{S_T1}, s{S_MB}, 1")
    A(f"s_lshl1_add_u32 s{d}, s{d}, s{S_T1}")
    A(f"s_lshl2_add_u32 s{d}, s{d}, s{S_W4}")
def q_poison(P):
    A = P.A
    def e():
        assert ("vmoved", 13) not in P.flags
        if Cfg.xpz == "C":
            fi_idx(A, S_T0)
            A(f"s_and_b32 s{S_T1}, s{S_T0}, 0x387")
            A(f"s_bfe_u32 s{S_T2}, s{S_T0}, 0x20003")
            A(f"s_lshl_b32 s{S_T2}, s{S_T2}, 5")
            A(f"s_or_b32 s{S_T1}, s{S_T1}, s{S_T2}")
            A(f"s_bfe_u32 s{S_T2}, s{S_T0}, 0x20005")
            A(f"s_lshl3_add_u32 s{S_T1}, s{S_T2}, s{S_T1}")
            A(f"s_lshl_b32 s{S_T1}, s{S_T1}, 10")
            A(f"s_cmp_lt_u32 s{S_T0}, 512")
            A("s_cselect_b64 exec, -1, 0")
            P.vm(f"buffer_store_dwordx4 {a(PZ,4)}, v{V_L16}, {S4(S_W)}, s{S_T1} offen sc1")
            A("s_mov_b64 exec, -1")
        h_off(A, S_T0)
        for q in range(2): P.vm(f"buffer_store_dword{'x4' if Cfg.pzw == 4 else ''} {a(PZ,Cfg.pzw)}, v{V_L16}, {S4(S_W)}, s{S_T0} offen offset:{q*1024} sc1", "pzh")
    return [dict(kind="act", emit=e, pre=["vset"])]
def q_rflag(P):
    A = P.A
    def e():
        fi_idx(A, S_T0)
        A(f"s_lshl_b32 s{S_T0}, s{S_T0}, 3")
        A(f"s_add_u32 s{S_T0}, s{S_T0}, {HF_OFF}")
        flag_store(P, 14, "pzh")
        P.flags.add("rflag")
    return [dict(kind="act", emit=e, waits="pzh", pre=["tok"])]
def q_rpoll(P, w):
    A = P.A
    d = V_P if w in "xs" else 30
    ld = f"buffer_load_dwordx2 v[{d}:{d+1}], v{V_L8}, {S4(S_W)}, s{S_QB} offen sc1"
    ex = "s_mov_b64 exec, 15" if w == "s" else "s_mov_b64 exec, 0xff" if w == "x" and Cfg.xpz == "S" else "s_mov_b32 exec_hi, 0"
    def e():
        if w == "h":
            A(f"s_lshl2_add_u32 s{S_T1}, s{S_KQ}, s{S_W4}")
            A(f"s_mul_i32 s{S_T1}, s{S_T1}, 7")
            A(f"s_lshr_b32 s{S_T1}, s{S_T1}, 1")
            A(f"s_bitcmp1_b32 s{S_G3}, 0")
            A(f"s_cselect_b32 s{S_T0}, 56, 0")
            A(f"s_add_u32 s{S_T1}, s{S_T1}, s{S_T0}")
            A(f"s_lshl_b32 s{S_T1}, s{S_T1}, 6")
            A(f"s_add_u32 s{S_QB}, s{S_T1}, {HF_OFF}")
        elif w == "s":
            A(f"s_lshr_b32 s{S_T1}, s5, 1")
            A(f"s_lshl2_add_u32 s{S_T1}, s{S_MB}, s{S_T1}")
            A(f"s_lshl2_add_u32 s{S_T1}, s{S_T1}, s{S_W4}")
            A(f"s_and_b32 s{S_T0}, s5, 1")
            A(f"s_lshl1_add_u32 s{S_T1}, s{S_T1}, s{S_T0}")
            A(f"s_lshl_b32 s{S_T1}, s{S_T1}, 5")
            A(f"s_add_u32 s{S_QB}, s{S_T1}, {HF_OFF}")
        else:
            A(f"s_lshl2_add_u32 s{S_T1}, s{S_MB}, s{S_W4}")
            A(f"s_lshl_b32 s{S_T1}, s{S_T1}, {7 if Cfg.xpz == 'S' else 8}")
            A(f"s_add_u32 s{S_QB}, s{S_T1}, {XF_OFF if Cfg.xpz == 'S' else HF_OFF}")
        A(ex)
        P.vm(ld, "rpoll" + w)
        A("s_mov_b64 exec, -1")
    def chk():
        P.wait_idx(P.idx["rpoll" + w])
        l = A.newlabel("pl"); o = A.newlabel("po")
        A(ex)
        A(f"s_mov_b32 s{S_T3}, {SPIN}")
        A.label(l)
        A(f"v_cmp_ne_u64 vcc, s[{S_TOK}:{S_TOK+1}], v[{d}:{d+1}]")
        A(f"s_cbranch_vccz {o}")
        A(f"s_sub_u32 s{S_T3}, s{S_T3}, 1")
        A(f"s_cbranch_scc1 {o}")
        A(ld)
        A("s_waitcnt vmcnt(0)")
        A(f"s_branch {l}")
        A.label(o)
        A("s_mov_b64 exec, -1")
        P.flags.add("rok" + w)
        if w == "h": P.stamp(2)
    return [dict(kind="ld", emit=e, pre=["tok"] if w in "xs" else ["rokx", ("dq", 7)])], [dict(kind="act", emit=chk, waits="rpoll" + w, pre=[] if w in "xs" else ["hst"])]

def g2order(): return [p for p in range(8) if Cfg.qord[p][1] == 0] + [p for p in range(8) if Cfg.qord[p][1] == 1]
def xr_home(g):
    if g < 4: return [("a", 224), ("a", 240), ("v", 96), ("v", 112)][g]
    if "X" in Cfg.seq1:
        s_, b = vorder()[6 + g]
        return ("a", 32*s_ + 16*b)
    return ("v", WQ + 16*g2order()[g - 4])
def xr_loads(g):
    du, b = Cfg.qord[g2order()[g]]
    k, hb = xr_home(g)
    return [(f"s_add_u32 s{S_T0}, s{S_XB4+t}, s{S_XJ+du}",
             f"buffer_load_dwordx4 {R(k,hb+4*t,4)}, v{V_L16}, {S4(S_W)}, s{S_T0} offen offset:{2048*b} {Cfg.hld}",
             ("xr", g) if t == 3 else None) for t in range(4)]
def q_xr(P, b):
    A = P.A
    def setup():
        if b: return
        A(f"v_bfe_u32 v14, v{V_L8}, 5, 2")
        A(f"v_and_b32 v15, 2, v14")
        A(f"v_add_u32 v14, v14, v15")
        A(f"v_bfe_u32 v15, v{V_L8}, 3, 2")
        A(f"v_lshl_add_u32 v14, v15, 5, v14")
        A(f"s_lshl_b32 s{S_T0}, s{S_MB}, 4")
        A(f"s_add_u32 s{S_T0}, s{S_T0}, s{S_W4}")
        A(f"s_lshl_b32 s{S_T0}, s{S_T0}, 13")
        A(f"v_lshlrev_b32 v14, 10, v14")
        A(f"v_add_u32 v{V_P+1}, s{S_T0}, v14")
    spec = []
    for g in range(4*b, 4*b + Cfg.xspec): spec += xr_loads(g)
    pre = ["rokx", ("dq", Cfg.g1pre)] if b == 0 else [("g2", 3)]
    items = [q_gate(P, f"x{b}", f"buffer_load_dword v{V_P}, v{V_P+1}, {S4(S_W)}, 0 offen offset:{2048*b} sc1", spec, pre, 4 if b else 14, setup)]
    for g in range(4*b + Cfg.xspec, 4*b + 4):
        for pt, t, tag in xr_loads(g):
            items.append(dict(kind="ld", emit=lambda pt=pt, t=t, tag=tag: (A(pt), P.vm(t, tag))))
    return items

def q_xr1(P):
    A = P.A
    def setup():
        A(f"v_bfe_u32 v14, v{V_L8}, 5, 3")
        A(f"v_bfe_u32 v15, v{V_L8}, 3, 2")
        A(f"v_lshl_add_u32 v14, v15, 5, v14")
        A(f"s_lshl_b32 s{S_T0}, s{S_MB}, 4")
        A(f"s_add_u32 s{S_T0}, s{S_T0}, s{S_W4}")
        A(f"s_lshl_b32 s{S_T0}, s{S_T0}, 13")
        A(f"v_lshlrev_b32 v14, 10, v14")
        A(f"v_add_u32 v{V_P+1}, s{S_T0}, v14")
        P.D = Cfg.D2
    spec = []
    for g in range(Cfg.xspec): spec += xr_loads(g)
    items = [q_gate(P, "x0", f"buffer_load_dword v{V_P}, v{V_P+1}, {S4(S_W)}, 0 offen sc1", spec, ["rokx", "rflag", ("dq", Cfg.g1pre)], 14, setup)]
    for g in range(Cfg.xspec, 8):
        for pt, t, tag in xr_loads(g):
            items.append(dict(kind="ld", emit=lambda pt=pt, t=t, tag=tag: (A(pt), P.vm(t, tag))))
    return items

def vorder():
    out = []; L = Cfg.vlag
    if Cfg.vrow: return [(k, b) for k in range(7) for b in range(2)]
    for k in range(7 + L):
        if k < 7: out.append((k, 0))
        if k - L >= 0: out.append((k - L, 1))
    return out
NRV = 6
def q_vdma(P, n):
    A = P.A
    s_, b = vorder()[n]
    items = []
    for q in range(4):
        def e(q=q):
            if q == 0:
                if n >= NRV: P.dwait_idx(P.didx[("vm", n - NRV)])
                A(f"s_lshr_b32 s{S_OFF2}, s{S_HS+s_}, 11")
                A(f"s_mul_i32 s{S_OFF2}, s{S_OFF2}, {64*7168}")
                A(f"s_bitcmp1_b32 s{S_HS+s_}, 10")
                A(f"s_cselect_b32 s{S_T0}, {8*7168}, 0")
                A(f"s_add_u32 s{S_OFF2}, s{S_OFF2}, s{S_T0}")
                A(f"s_add_u32 s{S_OFF2}, s{S_OFF2}, s{S_ETA}")
                if b: A(f"s_xor_b32 s{S_OFF2}, s{S_OFF2}, 128")
                A(f"s_add_u32 m0, s{S_RING}, {(n%NRV)*4096}")
                A("s_nop 0")
            P.vm(f"buffer_load_dwordx4 v{V_VD+q}, {S4(S_V)}, s{S_OFF2} offen offset:{q*1024} {Cfg.vh if b else Cfg.vm} lds", ("v", n) if q == 3 else None)
        items.append(dict(kind="ld", emit=e, pre=["vset"] + ([("vmoved", n - NRV)] if n >= NRV else [])))
    return items
def q_vmove(P, n):
    s_, b = vorder()[n]
    def e():
        P.wait_idx(P.idx[("v", n)])
        for i in range(4):
            for hf in range(2):
                P.ds(f"ds_read_b64_tr_b16 {a(32*s_+16*b+4*i+2*hf, 2)}, v{V_TR+i} offset:{(n%NRV)*4096 + hf*2048}", ("vm", n))
        P.flags.add(("vmoved", n))
    return [dict(kind="act", emit=e, waits=("v", n), pre=[("g2", n - 6)] if n >= 10 and "X" in Cfg.seq1 else [])]
def vseq(P, cnt, lag=3):
    items = []
    for _ in range(cnt):
        if P.vn >= 14: break
        items += q_vdma(P, P.vn); P.vn += 1
        while P.vmn < P.vn - lag:
            items += q_vmove(P, P.vmn); P.vmn += 1
    return items
def vflush(P):
    items = []
    while P.vmn < P.vn:
        items += q_vmove(P, P.vmn); P.vmn += 1
    return items

def lut_build(P):
    A = P.A
    SC, ZE, T = WQ + 96, WQ + 100, WQ + 104
    P.need("sz")
    if Cfg.ff: P.stamp(9)
    for b in (SC, ZE):
        A(f"v_and_b32 v{b+3}, 0xffff0000, v{b+1}")
        A(f"v_lshlrev_b32 v{b+2}, 16, v{b+1}")
        A(f"v_and_b32 v{b+1}, 0xffff0000, v{b}")
        A(f"v_lshlrev_b32 v{b}, 16, v{b}")
    fl = ["0", "1.0", "2.0", "0x40400000", "4.0", "0x40a00000", "0x40c00000", "0x40e00000"]
    PP = WQ + 64
    for u in range(4):
        I4 = range(4)
        for i in I4: A(f"v_sub_f32 v{T+i}, {fl[2*u]}, v{ZE+i}")
        for i in I4: A(f"v_sub_f32 v{T+4+i}, {fl[2*u+1]}, v{ZE+i}")
        for i in I4: pk(A, T+i, T+i, T+4+i)
        for i in I4: A(f"v_and_b32 v{T+4+i}, 0xffff0000, v{T+i}")
        for i in I4: A(f"v_lshlrev_b32 v{T+i}, 16, v{T+i}")
        for i in I4: A(f"v_mul_f32 v{T+4+i}, v{T+4+i}, v{SC+i}")
        for i in I4: A(f"v_mul_f32 v{T+i}, v{T+i}, v{SC+i}")
        for i in I4: pk(A, PP+4*u+i, T+i, T+4+i)
        P.pump(2, True)
    A(f"s_mov_b32 s{S_PS0}, 0x06040200")
    A(f"s_mov_b32 s{S_PS1}, 0x07050301")
    for i in range(4):
        for hh in range(2):
            A(f"v_perm_b32 v{LUT+4*i+hh}, v{PP+8*hh+4+i}, v{PP+8*hh+i}, s{S_PS0}")
            A(f"v_perm_b32 v{LUT+4*i+2+hh}, v{PP+8*hh+4+i}, v{PP+8*hh+i}, s{S_PS1}")
    A(f"s_mov_b32 s{S_PS0}, 0x05010400")
    A(f"s_mov_b32 s{S_PS1}, 0x07030602")
    P.flags.add("lut")

def dequant(P, p):
    A = P.A
    du, b = Cfg.qord[p]
    if du == 0: P.until("tok")
    if Cfg.ff and p == 0: P.stamp(10)
    P.need(("q", p))
    if Cfg.ff and p < 3: P.stamp(11 + p)
    rb = RAW + 32*p if du == 0 else RAW
    W = WQ + 16*p
    r = lambda j, i: rb + 4*j + i
    SEL = RAW + 64 + 16*(p & 1); TM = SEL + 8
    def pchk(X):
        for k in range(8): X(f"v_xor_b32 v{SEL+k}, s{S_PAT+(k&3)}, v{W+8+k}")
        X(f"v_or3_b32 v{V_CHK}, v{SEL}, v{SEL+1}, v{SEL+2}")
        X(f"v_or3_b32 v{V_CHK+1}, v{SEL+3}, v{SEL+4}, v{SEL+5}")
        X(f"v_or3_b32 v{V_CHK}, v{V_CHK}, v{SEL+6}, v{SEL+7}")
        X(f"v_or_b32 v{V_CHK}, v{V_CHK}, v{V_CHK+1}")
        X(f"v_and_b32 v{V_CHK}, s{S_MSK}, v{V_CHK}")
        X(f"v_cmp_ne_u32 vcc, 0, v{V_CHK}")
    if du == 0:
        for hh in range(2):
            for i in range(4):
                A(f"v_cvt_pk_u16_u32 v{W+4*i+2*hh}, v{r(4*hh,i)}, v{r(4*hh+2,i)}")
                A(f"v_cvt_pk_u16_u32 v{W+4*i+2*hh+1}, v{r(4*hh+1,i)}, v{r(4*hh+3,i)}")
            P.pump(1, True)
        A(f"v_or3_b32 v{V_CHK}, v{W}, v{W+1}, v{W+2}")
        A(f"v_or3_b32 v{V_CHK+1}, v{W+3}, v{W+4}, v{W+5}")
        for k in range(6, 14, 4):
            A(f"v_or3_b32 v{V_CHK}, v{V_CHK}, v{W+k}, v{W+k+1}")
            A(f"v_or3_b32 v{V_CHK+1}, v{V_CHK+1}, v{W+k+2}, v{W+k+3}")
        A(f"v_or3_b32 v{V_CHK}, v{V_CHK}, v{W+14}, v{W+15}")
        A(f"v_or_b32 v{V_CHK}, v{V_CHK}, v{V_CHK+1}")
        A(f"v_and_b32 v{V_CHK}, 0xfff8fff8, v{V_CHK}")
        A(f"v_cmp_ne_u32 vcc, 0, v{V_CHK}")
        for k in range(8): A(f"v_lshl_or_b32 v{SEL+k}, v{W+2*k+1}, 8, v{W+2*k}")
        A(f"s_lshl2_add_u32 s{S_T0}, s{S_XJ}, s{S_PKB}")
        A(f"s_cbranch_vccnz dqg{p}{SFX[0]}")
        for k in range(8): A(f"v_or_b32 v{rb+8+k}, s{S_PAT+(k&3)}, v{SEL+k}")
        for k in range(2): P.vm(f"buffer_store_dwordx4 {v(rb+8+4*k,4)}, v{V_L16}, {S4(S_W)}, s{S_T0} offen offset:{2048*b+1024*k} sc1")
    else:
        pchk(A)
        if not Cfg.nock: A(f"s_cbranch_vccnz dqs{p}{SFX[0]}")
        A.label(f"dqf{p}{SFX[0]}")
        C = Asm()
        C.label(f"dqs{p}{SFX[0]}")
        C(f"s_mov_b32 s{S_T3}, {Cfg.pspin}")
        C.label(f"dql{p}{SFX[0]}")
        for t in pk_loads(p): C(t)
        C("s_waitcnt vmcnt(0)")
        pchk(C)
        C(f"s_cbranch_vccz dqf{p}{SFX[0]}")
        C(f"s_sub_u32 s{S_T3}, s{S_T3}, 1")
        C(f"s_cbranch_scc0 dql{p}{SFX[0]}")
        C(f"s_branch dqg{p}{SFX[0]}")
        WARM.append(C.text())
    for hh in range(2):
        for i in range(4):
            d = W + 4*i + 2*hh
            A(f"v_perm_b32 v{d+1}, v{LUT+4*i+1}, v{LUT+4*i}, v{SEL+2*i+hh}")
            A(f"v_perm_b32 v{TM+4*hh+i}, v{LUT+4*i+3}, v{LUT+4*i+2}, v{SEL+2*i+hh}")
        for i in range(4):
            d = W + 4*i + 2*hh
            A(f"v_perm_b32 v{d}, v{TM+4*hh+i}, v{d+1}, s{S_PS0}")
            A(f"v_perm_b32 v{d+1}, v{TM+4*hh+i}, v{d+1}, s{S_PS1}")
    A.label(f"dqr{p}{SFX[0]}")
    P.flags.add(("dq", p))
    P.pump(2, True)
    C = Asm()
    C.label(f"dqg{p}{SFX[0]}")
    SC = W; ZE = W + 4
    if du:
        for j in range(8):
            if j == 0:
                C(f"s_mul_i32 s{S_T0}, s{S_XJ+du}, 448")
                if b: C(f"s_add_u32 s{S_T0}, s{S_T0}, {64*14336}")
            else: C(f"s_add_u32 s{S_T0}, s{S_T0}, {(13 if j == 4 else 1)*14336}")
            C(f"buffer_load_dwordx4 {v(rb+4*j,4)}, v{V_QO}, {S4(S_Q)}, s{S_T0} offen")
    C(f"v_bfe_u32 v{V_CHK}, v{V_L8}, 3, 4")
    C(f"v_lshlrev_b32 v{V_CHK}, 3, v{V_CHK}")
    C(f"s_lshl_b32 s{S_T0}, s{S_CB}, 7")
    C(f"buffer_load_dwordx2 v[{SC}:{SC+1}], v{V_CHK}, {S4(S_S)}, s{S_T0} offen")
    C(f"buffer_load_dwordx2 v[{ZE}:{ZE+1}], v{V_CHK}, {S4(S_Z)}, s{S_T0} offen")
    C("s_waitcnt vmcnt(0)")
    for b in (SC, ZE):
        C(f"v_and_b32 v{b+3}, 0xffff0000, v{b+1}")
        C(f"v_lshlrev_b32 v{b+2}, 16, v{b+1}")
        C(f"v_and_b32 v{b+1}, 0xffff0000, v{b}")
        C(f"v_lshlrev_b32 v{b}, 16, v{b}")
    for q in range(4):
        r0 = rb + 8*q; r1 = r0 + 4
        for i in range(4):
            C(f"v_cvt_f32_i32 v{r0+i}, v{r0+i}")
            C(f"v_cvt_f32_i32 v{r1+i}, v{r1+i}")
            pk(C, r0+i, r0+i, r1+i)
            C(f"v_and_b32 v{r1+i}, 0xffff0000, v{r0+i}")
            C(f"v_lshlrev_b32 v{r0+i}, 16, v{r0+i}")
            C(f"v_sub_f32 v{r1+i}, v{r1+i}, v{ZE+i}")
            C(f"v_sub_f32 v{r0+i}, v{r0+i}, v{ZE+i}")
            pk(C, r0+i, r0+i, r1+i)
            C(f"v_and_b32 v{r1+i}, 0xffff0000, v{r0+i}")
            C(f"v_lshlrev_b32 v{r0+i}, 16, v{r0+i}")
            C(f"v_mul_f32 v{r1+i}, v{r1+i}, v{SC+i}")
            C(f"v_mul_f32 v{r0+i}, v{r0+i}, v{SC+i}")
            pk(C, r0+i, r0+i, r1+i)
    for q in range(4):
        for i in range(4): C(f"v_mov_b32 v{W+4*i+q}, v{rb+8*q+i}")
    C(f"s_branch dqr{p}{SFX[0]}")
    COLD.append(C.text())

def g2(P):
    A = P.A
    ACC = 32
    red_addrs(A, V_RA)
    A(f"s_and_b32 s{S_T1}, s{S_G3}, 1")
    A(f"s_lshl_b32 s{S_T1}, s{S_T1}, 3")
    A(f"s_lshr_b32 s{S_T0}, s{S_W4}, 1")
    A(f"s_add_u32 s{S_T1}, s{S_T1}, s{S_T0}")
    for p in range(4):
        A(f"s_add_u32 s{S_T0}, s{S_KQ}, {1+p}")
        A(f"s_and_b32 s{S_T0}, s{S_T0}, 3")
        A(f"s_lshl1_add_u32 s{S_T0}, s{S_T0}, s{S_T1}")
        for a_ in range(2):
            if a_: A(f"s_xor_b32 s{S_T0}, s{S_T0}, 1")
            A(f"s_mul_i32 s{S_T2}, s{S_T0}, {112*1024}")
            A(f"s_add_u32 s{S_T2}, s{S_T2}, {H_OFF}")
            A(f"v_add_u32 v{V_AO+2*p+a_}, s{S_T2}, v{V_L16}")
    A(f"v_bfe_u32 v14, v{V_L8}, 3, 4")
    A(f"v_lshrrev_b32 v15, 7, v{V_L8}")
    A(f"v_mul_u32_u24 v{V_OUT}, 7168, v14")
    A(f"v_lshl_add_u32 v{V_OUT}, v15, 4, v{V_OUT}")
    A(f"v_bfe_u32 v14, v{V_L8}, 3, 3")
    A(f"v_lshrrev_b32 v15, 6, v{V_L8}")
    A(f"v_min_u32 v15, 6, v15")
    A(f"v_mul_u32_u24 v14, 112, v14")
    A(f"v_add_u32 v14, v14, v15")
    A(f"s_lshl2_add_u32 s{S_T0}, s{S_KQ}, s{S_W4}")
    A(f"s_mul_i32 s{S_T0}, s{S_T0}, 7")
    A(f"s_bitcmp1_b32 s{S_G3}, 0")
    A(f"s_cselect_b32 s{S_T1}, {8*112}, 0")
    A(f"s_add_u32 s{S_T0}, s{S_T0}, s{S_T1}")
    A(f"s_add_u32 s{S_T0}, s{S_T0}, {H_OFF >> 10}")
    A(f"v_add_u32 v14, s{S_T0}, v14")
    A(f"v_lshlrev_b32 v{V_OUT+1}, 10, v14")
    od = g2order()
    def ck(g):
        P.need(("xr", g))
        k, hb = xr_home(g)
        rl = []
        for pt, t, tag in xr_loads(g): rl += [pt, t]
        check(P, [(k, hb + 4*t) for t in range(4)], rl)
    for g in range(8):
        p = od[g]
        X1 = "X" in Cfg.seq1
        if g == 0 or (g == 4 and not X1): ck(g)
        k, b = xr_home(g)
        for t in (1, 2, 3, 0):
            for i in range(4):
                mfma(A, v(ACC+16*t+4*i, 4), v(WQ+16*p+4*i, 4), R(k, b+4*t, 4), g == 0)
                if i % 2 == 1: P.pump(1, True)
                if g == 7 and t in (3, 0):
                    for tt in ((1,) if t == 3 else (2,)):
                        P.ds(f"ds_write_b128 v{V_RA}, {v(ACC+16*tt+4*i,4)} offset:{BUF + (tt-1)*4096 + i*1024}")
            if t == 3 and g != 7 and (g != 3 or X1): ck(g + 1)
        P.flags.add(("g2", g))
    P.stamp(8)
    for i in range(4):
        P.ds(f"ds_write_b128 v{V_RA}, {v(ACC+48+4*i,4)} offset:{BUF + 2*4096 + i*1024}")
    assert "rflag" in P.flags
    h_off(A, S_OFF)
    P.dall()
    A("s_barrier")
    R0 = 128
    for t in range(3):
        for i in range(4):
            P.ds(f"ds_read_b128 {v(R0+16*t+4*i,4)}, v{V_RA+1+t} offset:{BUF + t*4096 + i*1024}", ("r2", t))
    P.dneed(("r2", 0)); add2(A, R0, R0, ACC, 16)
    P.dneed(("r2", 2)); add2(A, R0+16, R0+16, R0+32, 16); add2(A, R0, R0, R0+16, 16)
    PK = R0 + 16
    for f in range(2):
        for q in range(4):
            r = 2*f + (q >> 1); i = 2*(q & 1)
            pk(A, PK + 4*f + q, R0 + 4*i + r, R0 + 4*(i+1) + r)
        unpoison(A, PK + 4*f)
        P.vm(f"buffer_store_dwordx4 {v(PK+4*f,4)}, v{V_L16}, {S4(S_W)}, s{S_OFF} offen offset:{1024*f} sc1", "hst")
    P.flags.add("hst")
    P.stamp(5)

G3STEPS = [(p, s_) for p in range(4) for s_ in range(7)]
NH = 14
def h_home(n):
    k = n % NH
    return ("v", 176 + 8*k) if k < 10 else ("a", 224 + 8*(k - 10))
QA = lambda k: 32 + 16*k
ACCQ = {0: [0, 1, 2, 3], 1: [4, 5, 6, 7], 2: [0, 1, 2, 3], 3: [4, 5, 6, 7]}
DUMP = {0: 0, 1: 12288, 2: 0, 3: 12288}
RX = 176
def h_loads(n):
    p, s_ = G3STEPS[n]
    k, b = h_home(n)
    return [(None, f"buffer_load_dwordx4 {R(k,b+4*a_,4)}, v{V_AO+2*p+a_}, {S4(S_W)}, s{S_HS+s_} offen {Cfg.hld}", ("h", n) if a_ else None) for a_ in range(2)]
def q_h(P, n):
    return [dict(kind="ld", emit=lambda t=t, tag=tag: P.vm(t, tag), pre=([("g3", n - NH)] if n >= NH else [])) for _, t, tag in h_loads(n)]
def q_hgate(P):
    spec = []
    for n in range(Cfg.hspec): spec += h_loads(n)
    return [q_gate(P, "h", f"buffer_load_dword v{V_P}, v{V_OUT+1}, {S4(S_W)}, 0 offen sc1", spec, ["hst", "rokh"], 6)]
RXB = [160, 184, 208]
def tpos(e): return 4*(e // 3) + e % 3
TAGS = [3, 7, 11, 15, 19, 21]
def px_ops(op, base, so):
    out = [f"buffer_{op}_dwordx4 {v(base+4*i,4)}, v{V_L16}, {S4(S_W)}, s{so} offen offset:{1024*i} sc1" for i in range(4)]
    out.append(f"buffer_{op}_dwordx4 {v(base+16,4)}, v{V_L16}, {S4(S_W)}, s{so+1} offen sc1")
    out.append(f"buffer_{op}_dwordx2 {v(base+20,2)}, v{V_L8}, {S4(S_W)}, s{so+1} offen offset:1024 sc1")
    return out
S_RXO = 36

def g3(P):
    A = P.A
    P.until("hok")
    P.g3 = True
    P.D = Cfg.D3
    vo = vorder()
    sd = Side(P)
    def dump(p):
        rec = Rec(); px_off(rec, S_OFF, p, True); rec(f"s_add_u32 s{S_OFF+1}, s{S_OFF}, 4096")
        sal = rec.l; assert len(sal) == 8
        for t in (1, 2, 3):
            for i in range(4):
                sd.add(lambda t=t, i=i: P.ds(f"ds_write_b128 v{V_RA}, {v(QA(ACCQ[p][t])+4*i,4)} offset:{DUMP[p] + (t-1)*4096 + i*1024}", ("dump", p)), 2)
                if p < 3:
                    if sal: sd.add(lambda t=sal.pop(0): A(t)); sd.add(lambda t=sal.pop(0): A(t))
                    elif Cfg.dwsp[p]: sd.wait(Cfg.dwsp[p])
        if p < 3: sd.wait(Cfg.barw)
    def bar(): sd.add(lambda: (P.dall(), A("s_nop 0" if "B" in Cfg.skip else "s_barrier")), 2)
    def lreads(p, T):
        for t in range(3):
            for i in range(4):
                sd.add(lambda t=t, i=i: P.ds(f"ds_read_b128 {v(T[t]+4*i,4)}, v{V_RA+1+t} offset:{DUMP[p] + t*4096 + i*1024}", ("r3", p, t)), 2)
    def reduce_send(p):
        own = QA(ACCQ[p][0]); T = [QA(k) for k in ACCQ[p][1:]]
        bar()
        lreads(p, T)
        sd.add(lambda: P.dneed(("r3", p, 0)))
        for e in range(16): sd.addf(own+e, own+e, T[0]+e)
        sd.add(lambda: P.dneed(("r3", p, 2)))
        for e in range(16): sd.addf(T[2]+e, T[1]+e, T[2]+e)
        st = px_ops("store", T[0], S_OFF)
        for k in range(6):
            for e in range(3*k, min(3*k+3, 16)): sd.addf(T[0]+tpos(e), own+e, T[2]+e)
            sd.add(lambda k=k: A(f"v_mov_b32 v{T[0]+TAGS[k]}, s{S_TOK}"))
            sd.add(lambda k=k: P.vm(st[k], ("pst", p)), 2)
    def rx(p):
        for t in px_ops("load", RXB[p], S_RXO + 2*p): sd.add(lambda t=t: P.vm(t, ("rx", p)), 2)
    def rxck(p):
        P.need(("rx", p))
        if Cfg.nock: return
        l = A.newlabel("rk"); b = RXB[p]
        A(f"s_mov_b32 s{S_T3}, {SPIN}")
        A.label(l)
        for k in TAGS: A(f"v_cmpx_eq_u32 s{S_TOK}, v{b+k}")
        A("s_cmp_eq_u64 exec, -1")
        A("s_mov_b64 exec, -1")
        A(f"s_cbranch_scc1 {l}o")
        for t in px_ops("load", b, S_RXO + 2*p): A(t)
        A(f"s_sub_u32 s{S_T3}, s{S_T3}, 1")
        A("s_waitcnt vmcnt(0)")
        A(f"s_cbranch_scc0 {l}")
        A.label(l + "o")
    def tsetup():
        px_off(A, S_RXO, 0, False)
        for k in range(1, 6): A(f"s_add_u32 s{S_RXO+k}, s{S_RXO}, {(k>>1)*4*PXW + (k&1)*4096}")
        A(f"s_and_b32 s{S_T0}, s{S_G3}, 1")
        A(f"s_lshl2_add_u32 s{S_T0}, s{S_T0}, s{S_KQ}")
        A(f"s_lshr_b32 s{S_T1}, s{S_W4}, 1")
        A(f"s_lshl1_add_u32 s{S_T0}, s{S_T0}, s{S_T1}")
        A(f"s_mul_i32 s{S_T0}, s{S_T0}, {16*7168}")
        A(f"s_lshr_b32 s{S_T1}, s{S_G3}, 1")
        A(f"s_lshl_b32 s{S_T1}, s{S_T1}, 8")
        A(f"s_add_u32 s{S_T0}, s{S_T0}, s{S_T1}")
        A(f"s_add_u32 s{S_XB4+3}, s{S_T0}, s{S_ETA}")
    def ck(n, s2):
        P.need(("h", n), s2 is None)
        k, hb = h_home(n)
        check(P, [(k, hb), (k, hb + 4)], [t for _, t, _ in h_loads(n)], sd=s2)
    def vmv(m, nb=False):
        if m not in P.VM: return
        if nb and not (("v", m) in P.idx and P.idx[("v", m)] < P.done): return
        P.issue(("v", m)); P.VM.pop(m)["emit"]()
    P.pump(Cfg.D3 - 2*Cfg.hspec, True)
    for m in sorted(P.VM): vmv(m, True)
    tsetup()
    ck(0, None)
    for n, (p, s_) in enumerate(G3STEPS):
        if (p, s_) == (3, Cfg.rx01): rx(0); rx(1)
        for b in range(2):
            m = vo.index((s_, b))
            vmv(m)
            P.until(("vmoved", m)); P.dwait_idx(P.didx[("vm", m)])
        k, hb = h_home(n)
        sd.drain_hi()
        for t in (1, 2, 3, 0):
            if s_ == 6 and t == 3:
                assert p == 3 or not sd.q, (p, len(sd.q))
                sd.drain(); dump(p)
                if p < 3: reduce_send(p)
            for i in range(4):
                mfma(A, v(QA(ACCQ[p][t])+4*i, 4), a(32*s_+16*(t & 1)+4*i, 4), R(k, hb+4*(t >> 1), 4), s_ == 0)
                if t == 2 and i == 3 and n < 27: ck(n + 1, sd)
                if t == 3 and i == 1 and n < 6:
                    for b in range(2): vmv(vo.index((s_ + 1, b)))
                    for m in sorted(P.VM): vmv(m, True)
                sd.gap(2 if s_ == 6 or p == 0 else Cfg.bud[p - 1])
        P.flags.add(("g3", n))
        if Cfg.fine >= 0 and 0 <= n - Cfg.fine < 8: P.stamp(8 + n - Cfg.fine, True)
        if n in (6, 13, 20, 27): P.stamp(9 + (6, 13, 20, 27).index(n))
    rx(2); bar()
    T = [QA(1), QA(2), QA(3)]; own = QA(4)
    lreads(3, T)
    sd.drain()
    rxck(0); rxck(1)
    for e in range(16): A(f"v_add_f32 v{QA(0)+e}, v{RXB[0]+tpos(e)}, v{RXB[1]+tpos(e)}")
    P.dneed(("r3", 3, 0)); add2(A, own, own, T[0], 16)
    P.dneed(("r3", 3, 2)); add2(A, T[1], T[1], T[2], 16); add2(A, own, own, T[1], 16)
    add2(A, own, own, QA(0), 16)
    rxck(2)
    P.stamp(13)
    for s_ in range(2):
        for e in range(8*s_, 8*s_+8): A(f"v_add_f32 v{own+e}, v{own+e}, v{RXB[2]+tpos(e)}")
        for q in range(4): pk(A, T[0]+4*s_+q, own+8*s_+2*q, own+8*s_+2*q+1)
        P.vm(f"buffer_store_dwordx4 {v(T[0]+4*s_,4)}, v{V_OUT}, {S4(S_O)}, s{S_XB4+3} offen offset:{64*s_} {Cfg.ost}")
    assert not P.Q, P.Q[0]

def prog_C(A):
    P = Prog(A); P.vn = 0; P.vmn = 0; P.vlast = -9
    A.label("cls_C" + SFX[0])
    x8, slot = S_T2, S_T3
    T = WQ
    A(f"s_lshl2_add_u32 s{S_T0}, s{slot}, s{S_W4}")
    sm = Cfg.smap
    nx = 64 >> sm
    A(f"v_lshrrev_b32 v{T}, {1+sm}, v0")
    A(f"v_lshlrev_b32 v{T}, 11, v{T}")
    A(f"v_and_b32 v{T+1}, {(2 << sm) - 1}, v0")
    A(f"v_lshl_add_u32 v{T}, v{T+1}, 7, v{T}")
    A(f"v_lshlrev_b32 v{T+1}, 7, v0")
    A(f"s_lshl_b32 s{S_OFF}, s{S_T0}, 13")
    if sm:
        A(f"s_and_b32 s{S_T1}, s{x8}, {(1 << sm) - 1}")
        A(f"s_lshl_b32 s{S_T1}, s{S_T1}, {19 - sm}")
        A(f"s_add_u32 s{S_OFF}, s{S_OFF}, s{S_T1}")
    A(f"s_sub_u32 s{S_T1}, s{S_T0}, {nx}")
    A(f"s_lshl_b32 s{S_OFF2}, s{S_T1}, {16 - sm}")
    A(f"s_lshr_b32 s{S_T1}, s{x8}, {sm}")
    A(f"s_lshl_b32 s{S_T1}, s{S_T1}, {8 + sm}")
    A(f"s_add_u32 s{S_OFF2}, s{S_OFF2}, s{S_T1}")
    A(f"s_lshr_b32 s{S_QB}, s{slot}, 2")
    A(f"s_mul_i32 s{S_CB}, s{x8}, 7")
    A(f"s_add_u32 s{S_CB}, s{S_CB}, s{S_QB}")
    A(f"s_add_u32 s{S_QB}, s{S_MB}, s{S_QB}")
    def xj(du):
        if du: A(f"s_add_u32 s{S_QB}, s{S_QB}, 1")
        A(f"s_and_b32 s{S_XJ+du}, s{S_QB}, 3")
        A(f"s_and_b32 s{S_T1}, s{S_QB}, 2")
        A(f"s_add_u32 s{S_XJ+du}, s{S_XJ+du}, s{S_T1}")
        A(f"s_lshl_b32 s{S_XJ+du}, s{S_XJ+du}, 10")
    xj(0)
    c, g = T + 2, T + 3
    A(f"v_and_b32 v{c}, 15, v0")
    A(f"v_lshrrev_b32 v{g}, 4, v0")
    A(f"v_mul_u32_u24 v{V_QO}, {4*14336}, v{g}")
    A(f"v_lshl_add_u32 v{V_QO}, v{c}, 4, v{V_QO}")
    A(f"s_mul_i32 s{S_KQ}, s{S_W4}, {256*14336}")
    A(f"s_lshl_b32 s{S_T1}, s{S_CB}, 8")
    A(f"s_add_u32 s{S_KQ}, s{S_KQ}, s{S_T1}")
    A(f"v_add_u32 v{V_QO}, s{S_KQ}, v{V_QO}")
    A(f"v_lshlrev_b32 v{c}, 3, v{c}")
    A("s_waitcnt lgkmcnt(0)")
    if Cfg.touch:
        A(f"s_cmp_ge_u32 s{S_T0}, {nx}")
        A(f"s_cbranch_scc1 tchU{SFX[0]}")
        srd(A, S_X, 8, 9, 256 * 1024 * 2)
        A(f"buffer_load_dword v{V_CHK+2}, v{T+1}, {S4(S_X)}, s{S_OFF} offen")
        A(f"s_branch tchE{SFX[0]}")
        A.label("tchU" + SFX[0])
        A(f"s_cmp_ge_u32 s{S_T0}, 96")
        A(f"s_cbranch_scc1 tchT{SFX[0]}")
        srd(A, S_U, 16, 17, 1024 * 1024 * 2)
        A(f"buffer_load_dword v{V_CHK+2}, v{T}, {S4(S_U)}, s{S_OFF2} offen")
        if sm == 2:
            A(f"s_add_u32 s{S_OFF2}, s{S_OFF2}, {80 << 14}")
            A(f"buffer_load_dword v{V_CHK+2}, v{T}, {S4(S_U)}, s{S_OFF2} offen")
        A(f"s_branch tchE{SFX[0]}")
        A.label("tchT" + SFX[0])
    A(f"s_lshl2_add_u32 s{S_T1}, s2, s{S_W4}")
    A(f"s_cmp_lg_u32 s{S_T1}, {192*4}")
    A(f"s_cbranch_scc1 tchE{SFX[0]}")
    srd(A, S_D, 22, 23, 256)
    A(f"v_mov_b32 v{V_P}, s{S_TOK}")
    A(f"v_mov_b32 v{V_P+1}, s{S_TOK+1}")
    A("s_mov_b64 exec, 1")
    A(f"buffer_store_dwordx2 v[{V_P}:{V_P+1}], off, {S4(S_D)}, 0 sc1")
    A("s_mov_b64 exec, -1")
    A.label("tchE" + SFX[0])
    srd(A, S_S, 12, 13, 3584 * 2)
    srd(A, S_Z, 14, 15, 3584 * 2)
    srd(A, S_Q, 10, 11, 1024 * 3584 * 4)
    A(f"s_lshl_b32 s{S_T0}, s{S_CB}, 7")
    P.vm(f"buffer_load_dwordx2 {v(WQ+96,2)}, v{c}, {S4(S_S)}, s{S_T0} offen")
    P.vm(f"buffer_load_dwordx2 {v(WQ+100,2)}, v{c}, {S4(S_Z)}, s{S_T0} offen", "sz")
    Q = P.Q
    Q += q_qw(P, 0)
    P.pump(6)
    srd(A, S_D, 22, 23, 256)
    srd(A, S_W, 24, 25, 32 << 20)
    srd(A, S_V, 18, 19, 3584 * 3584 * 2)
    srd(A, S_O, 20, 21, 256 * 3584 * 2)
    if Cfg.tlb:
        A(f"v_lshlrev_b32 v{T}, {Cfg.tlb}, v0")
        A(f"s_mov_b64 exec, {(1 << min(64, (26 << 21) >> Cfg.tlb >> 1)) - 1 if Cfg.tlb > 19 else -1}")
        P.vm(f"buffer_load_dword v{V_CHK+2}, v{T}, {S4(S_V)}, 0 offen")
        P.vm(f"buffer_load_dword v{V_CHK+2}, v{T}, {S4(S_W)}, 0 offen")
        A(f"v_mul_u32_u24 v{T}, {7 << 16}, v0")
        A("s_mov_b64 exec, 15")
        P.vm(f"buffer_load_dword v{V_CHK+2}, v{T}, {S4(S_O)}, 0 offen")
        A("s_mov_b64 exec, -1")
    stamp_init2(A)
    A("s_setreg_imm32_b32 hwreg(HW_REG_MODE, 4, 2), 3")
    for du in range(1, 4): xj(du)
    A(f"s_lshr_b32 s{S_T0}, s{S_W4}, 1")
    A(f"s_lshl1_add_u32 s{S_T0}, s{S_CB}, s{S_T0}")
    A(f"s_and_b32 s{S_T1}, s{S_W4}, 1")
    A(f"s_lshl2_add_u32 s{S_T0}, s{S_T0}, s{S_T1}")
    A(f"s_lshl_b32 s{S_T0}, s{S_T0}, 13")
    A(f"s_add_u32 s{S_PKB}, s{S_T0}, {PK_OFF}")
    A(f"s_lshr_b32 s{S_KQ}, s{x8}, 1")
    A(f"s_and_b32 s{S_T0}, s{x8}, 1")
    A(f"s_mul_i32 s{S_T0}, s{S_T0}, 28")
    A(f"s_add_u32 s{S_G3}, s{S_T0}, s{slot}")
    A(f"s_xor_b32 s{S_ETA}, s{slot}, s{S_W4}")
    A(f"s_and_b32 s{S_ETA}, s{S_ETA}, 1")
    A(f"s_lshl_b32 s{S_ETA}, s{S_ETA}, 7")
    A(f"s_lshl2_add_u32 s{S_T0}, s{S_KQ}, s{S_W4}")
    A(f"s_mul_i32 s{S_T0}, s{S_T0}, 7")
    A(f"s_lshr_b32 s{S_T1}, s{slot}, 2")
    if Cfg.vrow:
        A(f"s_lshr_b32 s{S_HS}, s{S_ETA}, 5")
        A(f"s_add_u32 s{S_T1}, s{S_T1}, s{S_HS}")
        A(f"s_sub_u32 s{S_HS}, s{S_T1}, 7")
        A(f"s_cselect_b32 s{S_T1}, s{S_T1}, s{S_HS}")
    for s_ in range(7):
        if s_:
            A(f"s_add_u32 s{S_T1}, s{S_T1}, 1")
            A(f"s_cmp_ge_u32 s{S_T1}, 7")
            A(f"s_cselect_b32 s{S_T1}, 0, s{S_T1}")
        A(f"s_add_u32 s{S_HS+s_}, s{S_T0}, s{S_T1}")
        A(f"s_lshl_b32 s{S_HS+s_}, s{S_HS+s_}, 10")
    for t in range(4):
        A(f"s_xor_b32 s{S_T0}, s{S_W4}, {t}")
        A(f"s_lshl2_add_u32 s{S_T0}, s{S_MB}, s{S_T0}")
        A(f"s_lshl2_add_u32 s{S_T0}, s{S_T0}, s{S_W4}")
        A(f"s_lshl_b32 s{S_XB4+t}, s{S_T0}, 13")
    dma_chunk(A, T, T+1, T+2)
    A(f"v_and_b32 v{T}, 3, v{T}")
    A(f"v_lshrrev_b32 v{T+2}, 5, v0")
    A(f"v_lshl_add_u32 v{T}, v{T+2}, 4, v{T}")
    A(f"v_mul_u32_u24 v{T}, 7168, v{T}")
    A(f"v_add_u32 v{T}, v{T}, v{T+1}")
    A(f"s_lshr_b32 s{S_T0}, s{S_G3}, 1")
    A(f"s_lshl_b32 s{S_T0}, s{S_T0}, 8")
    A(f"v_add_u32 v{V_VD}, s{S_T0}, v{T}")
    for q in range(1, 4): A(f"v_add_u32 v{V_VD+q}, {(32*(q&1)+4*(q>>1))*7168 - q*1024}, v{V_VD}")
    tr_addrs(A, T, True)
    A(f"v_lshlrev_b32 v{V_L8}, 3, v0")
    for q in range(4): A(f"v_accvgpr_write_b32 a{PZ+q}, -1")
    P.flags.add("vset")
    rp, rc = q_rpoll(P, "x")
    hp, hc = q_rpoll(P, "h")
    qn = 1; pn = 0
    SA = SB = None
    for ch in Cfg.seq1:
        if ch == "(": SA = []; SB = []; continue
        if ch == ")":
            na, nb_ = len(SA), len(SB); ia = ib = 0
            while ia < na or ib < nb_:
                if ib >= nb_ or (ia < na and ia * nb_ <= ib * na): Q.append(SA[ia]); ia += 1
                else: Q.append(SB[ib]); ib += 1
            SA = SB = None; continue
        D = Q if SA is None else SB if ch in "Vf" else SA
        if ch == "q": D += q_qw(P, qn); qn += 1
        elif ch == "t": D += q_tok(P)
        elif ch == "h": D += q_poison(P)
        elif ch == "T": D += q_tokchk(P, True)
        elif ch == "F": D += q_rflag(P)
        elif ch == "r": D += hp
        elif ch == "c": D += hc
        elif ch == "R": D += rp
        elif ch == "C": D += rc
        elif ch == "V": D += vseq(P, 1, Cfg.vml)
        elif ch == "W": D += vseq(P, 1, NRV - 1)
        elif ch == "X": D += q_xr1(P)
        elif ch == "f": D += vflush(P)
        elif ch in "12": D += q_xr(P, int(ch) - 1)
        elif ch == "H": D.append(dict(kind="act", emit=lambda: None, pre=["hst"]))
        elif ch == "G": D += q_hgate(P)
        else: assert 0, ch
    assert qn == 8
    for n in range(Cfg.hspec, 28):
        if n == Cfg.hspec + Cfg.vpos: Q += vseq(P, 14, NRV - 1)
        Q += q_h(P, n)
    P.VM = {m: q_vmove(P, m)[0] for m in range(P.vmn, 14)}
    lut_build(P)
    for p in range(8):
        dequant(P, p)
        if p == 3: P.stamp(15)
    P.stamp(3)
    g2(P)
    g3(P)

def build():
    COLD.clear(); WARM.clear()
    A = Asm()
    A.raw(f".globl {NAME}\n.p2align 8\n.type {NAME},@function\n{NAME}:")
    prologue(A)
    B = Asm(); B.uid = 1000
    prog_S(B)
    prog_C(A)
    A.label("kfin")
    stamp_flush(A)
    A("s_endpgm")
    A.raw(B.text())
    if Cfg.seq2:
        B2 = Asm(); B2.uid = 2000
        SFX[0] = "b"; Cfg.seq1 = Cfg.seq2
        if Cfg.vlag2 >= 0: Cfg.vlag = Cfg.vlag2
        prog_C(B2)
        B2("s_branch kfin")
        A.raw(B2.text())
    for c in WARM: A.raw(c)
    A.label("kend")
    A("s_endpgm")
    for c in COLD: A.raw(c)
    out = HEADER + "; @launch grid=(256,1,1) block=(256,1,1) lds=163840\n"
    out += '.amdgcn_target "amdgcn-amd-amdhsa--gfx950"\n.text\n'
    out += A.text()
    out += '.section .rodata,"a"\n.p2align 6\n' + kernel_desc(NAME)
    return out

if __name__ == "__main__":
    for kv in sys.argv[2:]:
        k, val = kv.split("=")
        setattr(Cfg, k, json.loads(val) if val[:1] in "0123456789[-" and val else val.replace("+", " "))
    open(sys.argv[1], "w").write(build())
```

```python
import sys, json
from collections import deque
from asmlib import *
NAME = "standalone__weight_only_int_quip__sampling_kernel"

S_X, S_Q, S_S, S_Z, S_U, S_V, S_O, S_W, S_D, S_ST = 28, 32, 36, 40, 44, 48, 52, 56, 60, 64
S_W4, S_MB, S_QB, S_CB, S_TOK = 68, 69, 70, 71, 72
S_HS = 74
S_RING, S_T0, S_T1, S_T2, S_T3 = 81, 82, 83, 84, 85
S_OFF, S_OFF2 = 26, 27
S_KQ, S_G3, S_ETA, S_PS0, S_PS1 = 3, 4, 5, 6, 7
S_STB = 86
XR_OFF, H_OFF = 0, 1 << 20
PK_OFF = 20 << 20
S_PAT, S_PKB, S_MSK = 44, 0, 1
XF_OFF, HF_OFF, PF_OFF, PX_OFF = 3 << 20, (3 << 20) + 4096, (3 << 20) + 16384, 4 << 20
V_L8, V_L16, V_P = 0, 1, 2
V_VD, V_TR, V_QO, V_CHK = 4, 8, 12, 13
LUT, RAW, WQ = 16, 32, 128
V_AO, V_RA = 16, 24
WREG = 40960
BUF = 24576
SPIN = 30000

class Cfg:
    stamps = False
    D = 8
    D3 = 28
    DS = 12
    qord = ((0, 0), (0, 1), (1, 0), (2, 0), (3, 0), (1, 1), (2, 1), (3, 1))
    vlag = 3
    seq1 = "htqTVFVVqqqRVqqqVCXfrWWWWHVVVVcG"
    seq2 = ""
    vlag2 = -1
    cbit = 0
    sl = 3
    spz = 5
    sbud = 2
    emu = 0
    pspin = 12
    spipe = 1
    smap = 1
    sslack = 6
    DS2 = 12
    sdw = 0
    D2 = 16
    vpos = 0
    tlb = 0
    ff = 0
    vrow = 0
    xpz = "S"
    pzw = 4
    schk = 14
    xspec = 2
    hspec = 4
    side = 1
    rx01 = 5
    hld = "sc1"
    ost = "sc1"
    vm = ""
    vh = ""
    qm = "nt"
    qh = ""
    skip = ""
    touch = 1
    stok = 10
    vml = 3
    dwsp = [1, 1, 0]
    bud = [2, 2, 4]
    barw = 3
    fine = -1
    nock = 0
    g1pre = 7
    spf = 0
    g3v = 2
    tm0 = 1
    vp = 4
    vps = [4, 4, 2]
    burst = 4
    ckg = 3
    cka = 2
    b3 = [2, 2, 2, 3]
    dw2 = [1, 2, 2, 2]
    pka = 1
    rx1b = 96
    rx2b = 102
    rxB = 0
    gmid = 1
    spl = [[0,4],[0,5],[0,6]]
    spd = 8
    dw64 = 0
    csl = 0
    tst = 0
    hsp = 7
    ck0 = [2, 2, 3]
    ck1 = [4, 3]
    dwp = 4
    rx0b = 60

SFX = [""]
def sreg(k): return S_STB + 2*k if k < 8 else 8 + 2*(k - 8)
def S4(d): return f"s[{d}:{d+3}]"
class Prog:
    def __init__(self, A):
        self.A = A
        self.nvm = 0; self.done = 0; self.idx = {}; self.lds = []
        self.nds = 0; self.ddone = 0; self.didx = {}
        self.flags = set(); self.Q = deque(); self.D = Cfg.D; self.g3 = False; self.isS = False
    def vm(self, text, tag=None):
        sk = False
        if "V" in Cfg.skip and S4(S_V) in text: sk = True
        if "H" in Cfg.skip and S4(S_W) in text and "load_dwordx4" in text: sk = True
        if "Q" in Cfg.skip and S4(S_Q) in text: sk = True
        if "P" in Cfg.skip and isinstance(tag, tuple) and tag[0] == "pst": sk = True
        if "h" in Cfg.skip and self.g3 and S4(S_W) in text and "load_dword" in text: sk = True
        if sk:
            if tag is not None: self.idx[tag] = self.nvm - 1
            return
        self.A(text)
        if tag is not None: self.idx[tag] = self.nvm
        if "_load_" in text: self.lds.append(self.nvm)
        self.nvm += 1
    def wait_idx(self, i):
        if i < self.done: return
        n = min(self.nvm - 1 - i, 63)
        self.A(f"s_waitcnt vmcnt({n})")
        self.done = self.nvm - n
    def ds(self, text, tag=None):
        if "L" in Cfg.skip and self.g3 and isinstance(tag, tuple) and tag[0] in ("dump", "r3")[:2 - ("l" in Cfg.skip)] and tag[1] < 4:
            self.didx[tag] = self.nds - 1
            return
        self.A(text)
        if tag is not None: self.didx[tag] = self.nds
        self.nds += 1
    def dwait_idx(self, i):
        if i < self.ddone: return
        n = min(self.nds - 1 - i, 15)
        self.A(f"s_waitcnt lgkmcnt({n})")
        self.ddone = self.nds - n
    def dall(self): self.dwait_idx(self.nds - 1)
    def wneed(self, it):
        if it["kind"] == "gate": return self.nvm
        if it["kind"] == "ld": return max(self.lds[-self.D] if len(self.lds) >= self.D else -1, self.nvm - 60)
        return self.idx[it["waits"]] if "waits" in it else -1
    def step(self, nb=False):
        if not self.Q: return None
        it = self.Q[0]
        if any(p not in self.flags for p in it.get("pre", ())): return None
        if nb and self.wneed(it) >= self.done: return None
        self.Q.popleft()
        if it["kind"] == "ld" and self.wneed(it) >= 0: self.wait_idx(self.wneed(it))
        it["emit"]()
        return it["kind"]
    def pump(self, n=1, nb=False):
        while n > 0:
            if self.step(nb) is None: return
            n -= 1
    def issue(self, tag, tab=None):
        tab = self.idx if tab is None else tab
        while tag not in tab:
            k = self.step()
            assert k is not None, f"deadlock waiting {tag}; head={self.Q[0] if self.Q else None} flags={sorted(map(str,self.flags))}"
    def need(self, tag, fill=True):
        self.issue(tag)
        while fill and self.idx[tag] >= self.done and self.Q:
            if self.wneed(self.Q[0]) > self.idx[tag]: break
            if self.step() is None: break
        self.wait_idx(self.idx[tag])
    def dneed(self, tag):
        self.issue(tag, self.didx); self.dwait_idx(self.didx[tag])
    def until(self, flag):
        while flag not in self.flags:
            k = self.step()
            assert k is not None, f"deadlock until {flag}; head={self.Q[0] if self.Q else None}"
    def stamp(self, k, fine=False):
        if Cfg.fine >= 0 and k >= 8 and not fine and not self.isS: return
        if Cfg.ff and 9 <= k <= 13 and self.g3: return
        if Cfg.stamps: self.A(f"s_memrealtime s[{sreg(k)}:{sreg(k)+1}]")

def srd(A, d, lo, hi, nbytes, add=0):
    if add:
        A(f"s_add_u32 s{d}, s{lo}, {add}")
        A(f"s_addc_u32 s{d+1}, s{hi}, 0")
    else:
        A(f"s_mov_b64 s[{d}:{d+1}], s[{lo}:{hi}]")
    A(f"s_mov_b32 s{d+2}, {nbytes}")
    A(f"s_mov_b32 s{d+3}, 0x20000")
def pk(A, d, lo, hi): A(f"v_cvt_pk_bf16_f32 v{d}, v{lo}, v{hi}")
def add2(A, d, x, y, n):
    for e in range(0, n, 2): A(f"v_pk_add_f32 {v(d+e,2)}, {v(x+e,2)}, {v(y+e,2)}")
def mfma(A, d, a_, b_, first): A(f"v_mfma_f32_16x16x32_bf16 {d}, {a_}, {b_}, {'0' if first else d}")

def stamp_flush(A, n=16):
    if not Cfg.stamps: return
    A("s_waitcnt vmcnt(0)")
    A(f"s_memrealtime s[{S_STB+14}:{S_STB+15}]")
    A("s_waitcnt lgkmcnt(0)")
    srd(A, S_ST, 24, 25, 1 << 20, 128 << 20)
    A(f"s_lshl_b32 s{S_T0}, s2, 2")
    A(f"s_add_u32 s{S_T0}, s{S_T0}, s{S_W4}")
    A(f"s_lshl_b32 s{S_T0}, s{S_T0}, 8")
    A("v_mov_b32 v4, 0")
    A("s_mov_b64 exec, 1")
    for k in range(n):
        A(f"v_mov_b32 v6, s{sreg(k)}")
        A(f"v_mov_b32 v7, s{sreg(k)+1}")
        A(f"buffer_store_dwordx2 v[6:7], v4, {S4(S_ST)}, s{S_T0} offen offset:{k*8}")
        A("s_nop 1")

def stamp_init2(A):
    if Cfg.stamps:
        A(f"s_memrealtime s[{S_STB+2}:{S_STB+3}]")
        for k in range(8, 16): A(f"s_mov_b64 s[{sreg(k)}:{sreg(k)+1}], 0")

def dma_chunk(A, row, ch, t):
    A(f"v_lshrrev_b32 v{row}, 3, v0")
    A(f"v_and_b32 v{ch}, 6, v{row}")
    A(f"v_and_b32 v{t}, 7, v0")
    A(f"v_xor_b32 v{ch}, v{ch}, v{t}")
    A(f"v_lshlrev_b32 v{ch}, 4, v{ch}")
def tr_addrs(A, t, perm=False):
    A(f"v_lshrrev_b32 v{t}, 2, v0")
    A(f"v_and_b32 v{t+1}, 6, v{t}")
    if perm:
        A(f"v_and_b32 v{t+2}, 3, v0")
        A(f"v_xor_b32 v{t+1}, v{t+1}, v{t+2}")
        A(f"v_lshlrev_b32 v{t+1}, 4, v{t+1}")
        A(f"v_lshl_add_u32 v{V_TR}, v{t}, 7, v{t+1}")
        for i in range(1, 4): A(f"v_xor_b32 v{V_TR+i}, {64*(i>>1) + 8*(i&1)}, v{V_TR}")
        for i in range(4): A(f"v_add_u32 v{V_TR+i}, s{S_RING}, v{V_TR+i}")
        return
    A(f"v_bfe_u32 v{t+2}, v0, 1, 1")
    A(f"v_or_b32 v{t+1}, v{t+1}, v{t+2}")
    A(f"v_lshlrev_b32 v{t+1}, 4, v{t+1}")
    A(f"v_lshl_add_u32 v{t+1}, v{t}, 7, v{t+1}")
    A(f"v_and_b32 v{t+2}, 1, v0")
    A(f"v_lshl_add_u32 v{V_TR}, v{t+2}, 3, v{t+1}")
    for i in range(1, 4): A(f"v_xor_b32 v{V_TR+i}, {32*i}, v{V_TR}")
    for i in range(4): A(f"v_add_u32 v{V_TR+i}, s{S_RING}, v{V_TR+i}")

def prologue(A):
    A("s_cmp_ge_u32 s2, 256")
    A("s_cbranch_scc1 kend")
    A("s_load_dwordx16 s[8:23], s[0:1], 0")
    A("s_load_dwordx2 s[24:25], s[0:1], 64")
    if Cfg.stamps:
        A(f"s_memrealtime s[{S_STB}:{S_STB+1}]")
        for k in range(1, 8): A(f"s_mov_b64 s[{S_STB+2*k}:{S_STB+2*k+1}], 0")
    A(f"s_memrealtime s[{S_TOK}:{S_TOK+1}]")
    A(f"s_getpc_b64 s[{S_ST}:{S_ST+1}]")
    A.label("pcbase")
    A(f"s_mov_b32 s{S_ST+2}, kend-pcbase")
    A(f"s_mov_b32 s{S_ST+3}, 0x20000")
    A(f"s_lshr_b32 s{S_T3}, s2, 3")
    A(f"s_mul_i32 s{S_T0}, s{S_T3}, ((kend-pcbase+4095)/4096)*128")
    A("v_lshlrev_b32 v254, 7, v0")
    A("v_cmp_gt_u32 vcc, (kend-pcbase+4095)/4096, v0")
    A("s_and_saveexec_b64 s[6:7], vcc")
    A("s_cbranch_execz pfskip")
    A(f"buffer_load_dword v255, v254, {S4(S_ST)}, s{S_T0} offen")
    A.label("pfskip")
    A("s_mov_b64 exec, -1")
    A("v_lshrrev_b32 v1, 6, v0")
    A("v_and_b32 v0, 63, v0")
    A(f"v_readfirstlane_b32 s{S_W4}, v1")
    A(f"s_and_b32 s{S_T2}, s2, 7")
    A(f"s_and_b32 s{S_MB}, s{S_T3}, 3")
    A(f"s_mul_i32 s{S_RING}, s{S_W4}, {WREG}")
    A(f"v_lshlrev_b32 v{V_L16}, 4, v0")
    A(f"s_cmp_ge_u32 s{S_T3}, 28")
    A("s_cbranch_scc1 cls_S")
    if Cfg.seq2:
        A(f"s_bitcmp1_b32 s{S_T3}, {Cfg.cbit}")
        A("s_cbranch_scc1 cls_Cb")

def q_tok(P):
    def e(): P.vm(f"buffer_load_dwordx2 v[{V_P}:{V_P+1}], off, {S4(S_D)}, 0 sc1", "tok")
    return [dict(kind="ld", emit=e)]
def q_tokchk(P, pat=False):
    A = P.A
    def e():
        P.wait_idx(P.idx["tok"])
        l = A.newlabel("tokl"); o = A.newlabel("toko")
        A(f"s_mov_b32 s{S_T3}, {SPIN}")
        A.label(l)
        A(f"v_readfirstlane_b32 s{S_TOK}, v{V_P}")
        A(f"v_readfirstlane_b32 s{S_TOK+1}, v{V_P+1}")
        A(f"s_cmp_lg_u64 s[{S_TOK}:{S_TOK+1}], 0")
        A(f"s_cbranch_scc1 {o}")
        A(f"s_sub_u32 s{S_T3}, s{S_T3}, 1")
        A(f"s_cbranch_scc1 {o}")
        A(f"buffer_load_dwordx2 v[{V_P}:{V_P+1}], off, {S4(S_D)}, 0 sc1")
        A("s_waitcnt vmcnt(0)")
        A(f"s_branch {l}")
        A.label(o)
        if pat:
            A(f"s_mov_b32 s{S_MSK}, 0xf8f8f8f8")
            for k in range(2):
                A(f"s_and_b32 s{S_PAT+2*k}, s{S_TOK+k}, s{S_MSK}")
                A(f"s_lshl_b32 s{S_PAT+2*k+1}, s{S_TOK+k}, 3")
                A(f"s_and_b32 s{S_PAT+2*k+1}, s{S_PAT+2*k+1}, s{S_MSK}")
        P.flags.add("tok")
    return [dict(kind="act", emit=e, waits="tok")]

COLD = []
def chk_code(A, regs):
    src = []; tmp = [14, 15]; out = 13
    def red(x):
        A(f"v_max3_u32 v{out}, v{x[0]}, v{x[1]}, v{x[2]}" if len(x) == 3 else f"v_max_u32 v{out}, v{x[0]}, v{x[1]}")
    cur = []
    for k, r in regs:
        if k == "a":
            t = [q for q in (14, 15, 13) if q not in cur][0]
            A(f"v_accvgpr_read_b32 v{t}, a{r}"); r = t
        cur.append(r)
        if len(cur) == 3: red(cur); cur = [out]
    if len(cur) == 2: red(cur); cur = [out]
    A(f"v_cmp_eq_u32 vcc, -1, v{cur[0]}")
WARM = []
def check(P, regs, reload, inline=False, sd=None):
    A = P.A
    l = A.newlabel("ck")
    if Cfg.nock: return
    if inline:
        A(f"s_mov_b32 s{S_T3}, {SPIN}")
        A.label(l + "l")
        chk_code(A, regs)
        A(f"s_cbranch_vccz {l}r")
        for t in reload: A(t)
        A(f"s_sub_u32 s{S_T3}, s{S_T3}, 1")
        A("s_waitcnt vmcnt(0)")
        A(f"s_cbranch_scc0 {l}l")
        A.label(l + "r")
        return
    if sd:
        rec = Rec(); chk_code(rec, regs)
        for t in rec.l: sd.hi.append(lambda t=t: A(t))
        sd.hi.append(lambda: (A(f"s_cbranch_vccnz {l}s"), A.label(l + "r")))
    else:
        chk_code(A, regs)
        A(f"s_cbranch_vccnz {l}s")
        A.label(l + "r")
    C = Asm()
    C.label(l + "s")
    C(f"s_mov_b32 s{S_T3}, {SPIN}")
    C.label(l + "l")
    for t in reload: C(t)
    C("s_waitcnt vmcnt(0)")
    chk_code(C, regs)
    C(f"s_cbranch_vccz {l}r")
    C(f"s_sub_u32 s{S_T3}, s{S_T3}, 1")
    C(f"s_cbranch_scc0 {l}l")
    C(f"s_branch {l}r")
    WARM.append(C.text())
def q_gate(P, name, probe, spec, pre, st=None, setup=None, mid=None):
    A = P.A
    def e():
        if setup: setup()
        l = A.newlabel("gt")
        if mid:
            P.vm(probe, name + "probe")
            for pt, t, tag in spec:
                if pt: A(pt)
                P.vm(t, tag)
            n0 = P.nvm
            mid()
            assert P.nvm == n0 and P.done <= P.idx[name + "probe"]
            A(f"s_mov_b32 s{S_T3}, {SPIN}")
            A.label(l)
            P.wait_idx(P.idx[name + "probe"])
            A(f"v_cmp_eq_u32 vcc, -1, v{V_P}")
            A(f"s_cbranch_vccz {l}o")
            A(f"s_sub_u32 s{S_T3}, s{S_T3}, 1")
            A(f"s_cbranch_scc1 {l}o")
            A(probe)
            for pt, t, tag in spec:
                if pt: A(pt)
                A(t)
            A(f"s_branch {l}")
            A.label(l + "o")
            P.flags.add(name + "ok")
            if st is not None: P.stamp(st)
            return
        A(f"s_mov_b32 s{S_T3}, {SPIN}")
        A.label(l)
        P.vm(probe, name + "probe")
        for pt, t, tag in spec:
            if pt: A(pt)
            P.vm(t, tag)
        P.wait_idx(P.idx[name + "probe"])
        A(f"v_cmp_eq_u32 vcc, -1, v{V_P}")
        A(f"s_cbranch_vccz {l}o")
        A(f"s_sub_u32 s{S_T3}, s{S_T3}, 1")
        A(f"s_cbranch_scc0 {l}")
        A.label(l + "o")
        P.flags.add(name + "ok")
        if st is not None: P.stamp(st)
    return dict(kind="gate", emit=e, pre=list(pre))
class Side:
    def __init__(self, P): self.q = deque(); self.hi = deque(); self.skip = 0; self.P = P
    def add(self, fn, cost=1): self.q.append((cost, fn))
    def wait(self, n): self.q.append((-n, None))
    def addf(self, d, x, y):
        if "A" in Cfg.skip and self.P.g3: return
        self.add(lambda: self.P.A(f"v_add_f32 v{d}, v{x}, v{y}"))
    def gap(self, budget=2):
        b0 = budget
        while budget > b0 - 2 and self.hi:
            self.hi.popleft()(); budget -= 1
        if self.skip: self.skip -= 1
        else:
            while self.q:
                c, f = self.q[0]
                if c < 0:
                    self.q.popleft(); self.skip = -c; break
                if c > budget: break
                self.q.popleft(); f(); budget -= c
        if budget == b0: self.P.pump(1, True)
    def drain_hi(self):
        while self.hi: self.hi.popleft()()
    def drain(self):
        self.drain_hi(); self.skip = 0
        while self.q:
            c, f = self.q.popleft()
            if c >= 0: f()
class Rec:
    def __init__(self): self.l = []
    def __call__(self, t): self.l.append(t)
def unpoison(A, r): A(f"v_min_u32 v{r}, -2, v{r}")

def flag_store(P, tv, waittag):
    A = P.A
    A(f"v_mov_b32 v{tv}, s{S_TOK}")
    A(f"v_mov_b32 v{tv+1}, s{S_TOK+1}")
    A("s_mov_b64 exec, 1")
    P.wait_idx(P.idx[waittag])
    P.vm(f"buffer_store_dwordx2 v[{tv}:{tv+1}], off, {S4(S_W)}, s{S_T0} sc1")
    A("s_mov_b64 exec, -1")

def red_addrs(A, ra):
    A(f"v_add_u32 v{ra}, s{S_RING}, v{V_L16}")
    for t in range(1, 4):
        A(f"s_xor_b32 s{S_T0}, s{S_W4}, {t}")
        A(f"s_mul_i32 s{S_T0}, s{S_T0}, {WREG}")
        A(f"v_add_u32 v{ra+t}, s{S_T0}, v{V_L16}")

def prog_S(A):
    P = Prog(A); P.D = Cfg.DS; P.isS = True
    A.label("cls_S")
    UD, XA, RA, T, ACC, RED, PZ = 4, 16, 24, 28, 128, 32, 124
    S_XB, S_UB, S_X8, S_XO, S_ROT = 3, 4, 5, 6, 7
    A(f"s_mov_b32 s{S_ROT}, s{S_MB}")
    if Cfg.smap == 0: A(f"s_mov_b32 s{S_X8}, s{S_T2}")
    elif Cfg.smap == 1:
        A(f"s_and_b32 s{S_X8}, s{S_T2}, 6")
        A(f"s_lshr_b32 s{S_T0}, s{S_ROT}, 1")
        A(f"s_add_u32 s{S_X8}, s{S_X8}, s{S_T0}")
        A(f"s_and_b32 s{S_T0}, s{S_T2}, 1")
        A(f"s_and_b32 s{S_MB}, s{S_ROT}, 1")
        A(f"s_lshl1_add_u32 s{S_MB}, s{S_T0}, s{S_MB}")
    else:
        A(f"s_and_b32 s{S_X8}, s{S_T2}, 4")
        A(f"s_add_u32 s{S_X8}, s{S_X8}, s{S_ROT}")
        A(f"s_and_b32 s{S_MB}, s{S_T2}, 3")
    dma_chunk(A, T, T+1, T+2)
    A(f"v_lshl_add_u32 v{UD}, v{T}, 11, v{T+1}")
    for q in range(1, 4): A(f"v_add_u32 v{UD+q}, {q*(8*2048-1024)}, v{UD}")
    A(f"s_lshr_b32 s{S_T0}, s{S_W4}, 1")
    A(f"s_lshl1_add_u32 s{S_T0}, s{S_MB}, s{S_T0}")
    A(f"s_lshl_b32 s{S_XB}, s{S_T0}, 16")
    A(f"s_lshl_b32 s{S_T0}, s{S_W4}, 9")
    A(f"s_add_u32 s{S_XB}, s{S_XB}, s{S_T0}")
    A(f"s_lshl_b32 s{S_UB}, s{S_W4}, 19")
    A(f"s_lshl_b32 s{S_T0}, s{S_X8}, 8")
    A(f"s_add_u32 s{S_UB}, s{S_UB}, s{S_T0}")
    for q in range(4): A(f"v_mov_b32 v{PZ+q}, -1")
    A(f"s_lshl2_add_u32 s{S_T0}, s{S_MB}, s{S_W4}")
    A(f"s_lshl_b32 s{S_T0}, s{S_T0}, 3")
    A(f"s_add_u32 s{S_T0}, s{S_T0}, s{S_X8}")
    A(f"s_lshl_b32 s{S_XO}, s{S_T0}, 12")
    A("s_waitcnt lgkmcnt(0)")
    srd(A, S_X, 8, 9, 256 * 1024 * 2)
    srd(A, S_U, 16, 17, 1024 * 1024 * 2)
    units = []
    L = Cfg.sl
    for gq in range(4 - L): units += [("u", gq, 0, 0), ("x", gq, 0, 0), ("x", gq, 1, 0), ("u", gq, 0, 1), ("u", gq, 1, 0), ("u", gq, 1, 1)]
    for gq in range(4 - L, 4): units += [("u", gq, 0, 0), ("x", gq, 0, 0), ("x", gq, 1, 0), ("u", gq, 1, 0)]
    for gq in range(4 - L, 4): units += [("u", gq, 0, 1), ("u", gq, 1, 1)]
    lastb0 = units.index(("u", 3, 1, 0))
    xun = lambda gq: units.index(("x", gq, 1, 0))
    NR = 7; DMP = {0: NR * 4096, 1: 0}
    uix = {}
    for n, u in enumerate(units):
        if u[0] == "u": uix[n] = len(uix)
    def home(n):
        k, gq, f, b = units[n]
        return 16 * (2*gq + f) if k == "x" else 128 + 16 * (uix[n] % 8)
    def dma(n):
        k, gq, f, b = units[n]
        items = []
        for q in range(4):
            def e(q=q):
                if q == 0:
                    if n >= NR: P.dwait_idx(P.didx[("rd", n - NR)])
                    A(f"s_add_u32 s{S_T0}, s{S_ROT}, {gq}")
                    A(f"s_and_b32 s{S_T0}, s{S_T0}, 3")
                    if k == "x":
                        A(f"s_lshl_b32 s{S_T0}, s{S_T0}, 7")
                        A(f"s_add_u32 s{S_OFF}, s{S_T0}, s{S_XB}")
                        if f: A(f"s_xor_b32 s{S_OFF}, s{S_OFF}, 65536")
                    else:
                        A(f"s_lshl_b32 s{S_T0}, s{S_T0}, 17")
                        A(f"s_add_u32 s{S_OFF}, s{S_T0}, s{S_UB}")
                        if f or b: A(f"s_add_u32 s{S_OFF}, s{S_OFF}, {f*65536 + b*128}")
                    A(f"s_add_u32 m0, s{S_RING}, {(n%NR)*4096}")
                    A("s_nop 0")
                P.vm(f"buffer_load_dwordx4 v{UD+q}, {S4(S_X if k=='x' else S_U)}, s{S_OFF} offen offset:{q*1024} lds", ("un", n) if q == 3 else None)
            items.append(dict(kind="ld", emit=e, pre=([("rd", n - NR)] if n >= NR else [])))
        return items
    sp, sc = q_rpoll(P, "s")
    def rflag():
        A(f"s_lshr_b32 s{S_T0}, s{S_X8}, 1")
        A(f"s_lshl2_add_u32 s{S_T0}, s{S_MB}, s{S_T0}")
        A(f"s_lshl_b32 s{S_T0}, s{S_T0}, 7")
        A(f"s_and_b32 s{S_T1}, s{S_X8}, 1")
        A(f"s_lshl2_add_u32 s{S_T1}, s{S_T1}, s{S_W4}")
        A(f"s_lshl3_add_u32 s{S_T0}, s{S_T1}, s{S_T0}")
        A(f"s_add_u32 s{S_T0}, s{S_T0}, {XF_OFF}")
        flag_store(P, T, "pz")
        P.flags.add("roks")
    if Cfg.xpz == "S":
        srd(A, S_W, 24, 25, 32 << 20)
        for q in range(4): P.vm(f"buffer_store_dword{'x4' if Cfg.pzw == 4 else ''} {v(PZ,Cfg.pzw)}, v{V_L16}, {S4(S_W)}, s{S_XO} offen offset:{q*1024} sc1", "pz")
    for n in range(24):
        P.Q += dma(n)
        if n == Cfg.stok: P.Q += q_tok(P)
        if n == Cfg.stok + 3: P.Q += q_tokchk(P)
        if Cfg.xpz == "S":
            if n == Cfg.stok + 3: P.Q.append(dict(kind="act", emit=rflag, waits="pz"))
        else:
            if n == Cfg.schk: P.Q += sp
            if n == Cfg.schk + 3: P.Q += sc
    P.pump(12)
    if Cfg.xpz != "S": srd(A, S_W, 24, 25, 32 << 20)
    P.pump(Cfg.DS - 12)
    srd(A, S_D, 22, 23, 256)
    srd(A, S_V, 18, 19, 3584 * 3584 * 2)
    stamp_init2(A)
    tr_addrs(A, T)
    c, g = T, T + 1
    A(f"v_and_b32 v{c}, 15, v0")
    A(f"v_lshrrev_b32 v{g}, 4, v0")
    A(f"v_lshlrev_b32 v{XA}, 7, v{c}")
    A(f"v_and_b32 v{T+2}, 6, v{c}")
    A(f"v_lshrrev_b32 v{T+3}, 1, v{g}")
    A(f"v_or_b32 v{T+2}, v{T+2}, v{T+3}")
    A(f"v_lshl_add_u32 v{XA}, v{T+2}, 4, v{XA}")
    A(f"v_and_b32 v{T+2}, 1, v{g}")
    A(f"v_lshl_add_u32 v{XA}, v{T+2}, 3, v{XA}")
    A(f"s_and_b32 s{S_T0}, s{S_W4}, 1")
    A(f"s_lshl_b32 s{S_T0}, s{S_T0}, 11")
    A(f"v_xor_b32 v{XA}, s{S_T0}, v{XA}")
    for k in range(1, 8): A(f"v_xor_b32 v{XA+k}, {32*(k&3) + 2048*(k>>2)}, v{XA}")
    for k in range(8): A(f"v_add_u32 v{XA+k}, s{S_RING}, v{XA+k}")
    red_addrs(A, RA)
    A(f"v_lshlrev_b32 v{V_L8}, 3, v0")
    sd = Side(P)
    def rd(n):
        k, gq, f, b = units[n]
        P.need(("un", n))
        base = home(n); lo = (n % NR) * 4096
        if k == "u":
            for i in range(4):
                for hf in range(2):
                    P.ds(f"ds_read_b64_tr_b16 {a(base+4*i+2*hf,2)}, v{V_TR+i} offset:{lo + hf*2048}", ("rd", n))
        else:
            for ff in range(2):
                for tt in range(2):
                    for h in range(2):
                        P.ds(f"ds_read_b64 {a(base+8*ff+4*tt+2*h,2)}, v{XA+4*tt+2*ff+h} offset:{lo}", ("rd", n))
        P.flags.add(("rd", n))
    def mm(n):
        k, gq, f, b = units[n]
        P.dneed(("rd", n))
        P.dneed(("rd", xun(gq)))
        for t in (1, 2, 3, 0):
            xb = 16 * (2*gq + (t >> 1)) + 8*f + 4*(t & 1)
            for i in range(4):
                d = v(ACC + 32*t + 16*b + 4*i, 4)
                mfma(A, d, a(home(n) + 4*i, 4), a(xb, 4), gq == 0 and f == 0)
                if n == 23 and t == 3 and i == 0: reduce(1)
                sd.gap(Cfg.sbud)
    def reduce(b):
        r = RED + 48*b
        for t in (1, 2, 3):
            for i in range(4):
                sd.add(lambda t=t, i=i: P.ds(f"ds_write_b128 v{RA}, {v(ACC+32*t+16*b+4*i,4)} offset:{DMP[b] + (t-1)*4096 + i*1024}", ("d1", b)), 2)
                if Cfg.sdw and not b: sd.wait(Cfg.sdw)
        sd.wait(3)
        sd.add(lambda: (P.dneed(("d1", b)), A("s_barrier")), 2)
        for t in (1, 2, 3):
            for i in range(4):
                sd.add(lambda t=t, i=i: P.ds(f"ds_read_b128 {v(r+16*(t-1)+4*i,4)}, v{RA+t} offset:{DMP[b] + (t-1)*4096 + i*1024}", ("r1", b, t)), 2)
        def adds(d, x, y, n):
            if b: sd.add(lambda: add2(A, d, x, y, n))
            else:
                for e in range(n): sd.addf(d+e, x+e, y+e)
        sd.add(lambda: P.dneed(("r1", b, 1)))
        adds(r, r, ACC+16*b, 16)
        sd.add(lambda: P.dneed(("r1", b, 3)))
        for f in range(2):
            adds(r+16+8*f, r+16+8*f, r+32+8*f, 8)
            adds(r+8*f, r+8*f, r+16+8*f, 8)
            for q in range(4): sd.add(lambda q=q, f=f: pk(A, r+16+8*f+q, r+8*f+2*q, r+8*f+2*q+1))
            sd.add(lambda f=f: unpoison(A, r+16+8*f))
            def st(f=f):
                P.until("roks")
                while P.Q: assert P.step() is not None
                P.vm(f"buffer_store_dwordx4 {v(r+16+8*f,4)}, v{V_L16}, {S4(S_W)}, s{S_XO} offen offset:{(2*b+f)*1024} sc1", "xst")
                if f: P.stamp(3 + b)
            sd.add(st, 2)
    def rd_ops(n):
        k, gq, f, b = units[n]
        base = home(n); lo = (n % NR) * 4096
        if k == "u": L = [f"ds_read_b64_tr_b16 {a(base+4*i+2*hf,2)}, v{V_TR+i} offset:{lo + hf*2048}" for i in range(4) for hf in range(2)]
        else: L = [f"ds_read_b64 {a(base+8*ff+4*tt+2*h,2)}, v{XA+4*tt+2*ff+h} offset:{lo}" for ff in range(2) for tt in range(2) for h in range(2)]
        def op(j):
            if j == 0:
                P.need(("un", n), False)
                if n in (0, 7, 15, 23): P.stamp(8 + (0, 7, 15, 23).index(n))
            P.ds(L[j], ("rd", n))
            if j == 7: P.flags.add(("rd", n))
        return [lambda j=j: op(j) for j in range(8)]
    if Cfg.spipe:
        UL = [n for n in range(24) if units[n][0] == "u"]
        last = lambda n: max(n, xun(units[n][1]))
        hi = deque(); nxt = 0
        def sgap(bud, rem):
            go = 2 * rem <= len(hi) + Cfg.sslack or len(hi) % 8
            if hi and go: hi.popleft()(); bud -= 1
            if P.step(True) is not None: bud -= 1
            if hi and go: hi.popleft()(); bud -= 1
            if sd.skip: sd.skip -= 1; return
            while sd.q and bud > 0:
                c, f = sd.q[0]
                if c < 0: sd.q.popleft(); sd.skip = -c; break
                sd.q.popleft(); f(); bud -= c
        def drain():
            while hi:
                hi.popleft()(); P.step(True)
        for j, n in enumerate(UL):
            while nxt <= last(n):
                hi.extend(rd_ops(nxt)); nxt += 1
            drain()
            if j + 1 < len(UL):
                while nxt <= last(UL[j + 1]):
                    hi.extend(rd_ops(nxt)); nxt += 1
            k, gq, f, b = units[n]
            P.dneed(("rd", last(n)))
            for t in (1, 2, 3, 0):
                xb = 16 * (2*gq + (t >> 1)) + 8*f + 4*(t & 1)
                for i in range(4):
                    mfma(A, v(ACC + 32*t + 16*b + 4*i, 4), a(home(n) + 4*i, 4), a(xb, 4), gq == 0 and f == 0)
                    if n in (23, lastb0) and t == 3 and i == 0:
                        reduce(b)
                        P.D = Cfg.DS2
                    sgap(2 if n in (23, lastb0) else Cfg.sbud, 16 - 4*((t - 1) & 3) - i)
    else:
        pend = []
        for n in range(24):
            rd(n)
            if n in (0, 7, 15, 23): P.stamp(8 + (0, 7, 15, 23).index(n))
            if units[n][0] == "u": pend.append(n)
            while len(pend) > 1 and ("rd", xun(units[pend[0]][1])) in P.flags:
                m = pend.pop(0)
                mm(m)
                if m == lastb0: reduce(0)
        assert pend == [23]
        mm(23)
    P.stamp(2)
    sd.drain()
    assert not P.Q
    if Cfg.spl:
        A(f"v_bfe_u32 v4, v{V_L16}, 4, 3")
        A(f"v_bfe_u32 v5, v{V_L16}, 7, 2")
        A(f"v_lshl_add_u32 v4, v5, 4, v4")
        A(f"v_mul_u32_u24 v4, 7168, v4")
        A(f"v_lshrrev_b32 v5, 9, v{V_L16}")
        A(f"v_lshl_add_u32 v4, v5, 7, v4")
        A("s_and_b32 s3, s2, 1")
        A("s_bfe_u32 s4, s2, 0x20001")
        A(f"s_lshl2_add_u32 s4, s4, s{S_W4}")
        A("s_mul_i32 s4, s4, 7")
        A("s_lshl1_add_u32 s5, s3, 1")
        A(f"s_lshl2_add_u32 s5, s{S_ROT}, s5")
        A("s_mul_i32 s3, s3, 14")
        for n, (r, s_) in enumerate(Cfg.spl):
            l = A.newlabel("sp")
            A(f"s_xor_b32 s6, s5, {r}")
            A("s_cmp_ge_u32 s6, 14")
            A(f"s_cbranch_scc1 {l}")
            A(f"s_lshr_b32 s{S_T0}, s6, 1")
            A(f"s_add_u32 s{S_T0}, s{S_T0}, {s_}")
            A(f"s_sub_u32 s{S_T1}, s{S_T0}, 7")
            A(f"s_cselect_b32 s{S_T0}, s{S_T0}, s{S_T1}")
            A(f"s_add_u32 s{S_T0}, s{S_T0}, s4")
            A(f"s_lshr_b32 s{S_T1}, s{S_T0}, 1")
            A(f"s_and_b32 s{S_T0}, s{S_T0}, 1")
            A(f"s_lshl3_add_u32 s{S_T0}, s{S_T1}, s{S_T0}")
            A(f"s_mul_i32 s{S_T0}, s{S_T0}, {8*7168}")
            A(f"s_add_u32 s6, s6, s3")
            A(f"s_lshl_b32 s6, s6, 8")
            A(f"s_add_u32 s{S_T0}, s{S_T0}, s6")
            if n >= Cfg.spd: A(f"s_waitcnt vmcnt({Cfg.spd - 1})")
            A(f"buffer_load_dword v{8+n}, v4, {S4(S_V)}, s{S_T0} offen")
            A.label(l)
    A("s_branch kfin")

S_XJ, S_XB4 = 64, 28
V_RF, V_OUT = WQ + 116, 28
PXW = 4352
PZ = 220
def pk_loads(p):
    du, b = Cfg.qord[p]
    W = WQ + 16*p
    return [f"s_lshl2_add_u32 s{S_T0}, s{S_XJ+du}, s{S_PKB}"] + \
           [f"buffer_load_dwordx4 {v(W+8+4*k,4)}, v{V_L16}, {S4(S_W)}, s{S_T0} offen offset:{2048*b+1024*k} sc1" for k in range(2)]
def q_qw(P, p):
    A = P.A
    items = []
    du, b = Cfg.qord[p]
    if du:
        L = pk_loads(p)
        for k in range(2):
            items.append(dict(kind="ld", emit=lambda k=k: (A(L[0]), P.vm(L[1+k], ("q", p) if k else None)), pre=["lut"]))
        return items
    assert p < 2
    for j in range(8):
        def e(j=j):
            if j == 0:
                A(f"s_mul_i32 s{S_OFF}, s{S_XJ+du}, 448")
                if b: A(f"s_add_u32 s{S_OFF}, s{S_OFF}, {64*14336}")
            else:
                A(f"s_add_u32 s{S_OFF}, s{S_OFF}, {(13 if j == 4 else 1)*14336}")
            P.vm(f"buffer_load_dwordx4 {v(RAW+32*p+4*j,4)}, v{V_QO}, {S4(S_Q)}, s{S_OFF} offen {Cfg.qm}", ("q", p) if j == 7 else None)
        items.append(dict(kind="ld", emit=e))
    return items

def h_off(A, d):
    A(f"s_lshl2_add_u32 s{d}, s{S_MB}, s{S_W4}")
    A(f"s_mul_i32 s{d}, s{d}, 56")
    A(f"s_add_u32 s{d}, s{d}, s{S_CB}")
    A(f"s_lshl_b32 s{d}, s{d}, 11")
    A(f"s_add_u32 s{d}, s{d}, {H_OFF}")
def px_off(A, d, p, send):
    if send:
        A(f"s_add_u32 s{d}, s{S_KQ}, {1+p}")
        A(f"s_and_b32 s{d}, s{d}, 3")
        A(f"s_lshl2_add_u32 s{d}, s{S_G3}, s{d}")
    else:
        A(f"s_lshl2_add_u32 s{d}, s{S_G3}, s{S_KQ}")
    A(f"s_mul_i32 s{d}, s{d}, 12")
    A(f"s_add_u32 s{d}, s{d}, s{S_W4}")
    A(f"s_mul_i32 s{d}, s{d}, {PXW}")
    A(f"s_add_u32 s{d}, s{d}, {PX_OFF + p*4*PXW}")
def fi_idx(A, d):
    A(f"s_lshr_b32 s{d}, s{S_MB}, 1")
    A(f"s_mul_i32 s{d}, s{d}, 56")
    A(f"s_add_u32 s{d}, s{d}, s{S_CB}")
    A(f"s_and_b32 s{S_T1}, s{S_MB}, 1")
    A(f"s_lshl1_add_u32 s{d}, s{d}, s{S_T1}")
    A(f"s_lshl2_add_u32 s{d}, s{d}, s{S_W4}")
def q_poison(P):
    A = P.A
    def e():
        assert ("vmoved", 13) not in P.flags
        if Cfg.xpz == "C":
            fi_idx(A, S_T0)
            A(f"s_and_b32 s{S_T1}, s{S_T0}, 0x387")
            A(f"s_bfe_u32 s{S_T2}, s{S_T0}, 0x20003")
            A(f"s_lshl_b32 s{S_T2}, s{S_T2}, 5")
            A(f"s_or_b32 s{S_T1}, s{S_T1}, s{S_T2}")
            A(f"s_bfe_u32 s{S_T2}, s{S_T0}, 0x20005")
            A(f"s_lshl3_add_u32 s{S_T1}, s{S_T2}, s{S_T1}")
            A(f"s_lshl_b32 s{S_T1}, s{S_T1}, 10")
            A(f"s_cmp_lt_u32 s{S_T0}, 512")
            A("s_cselect_b64 exec, -1, 0")
            P.vm(f"buffer_store_dwordx4 {a(PZ,4)}, v{V_L16}, {S4(S_W)}, s{S_T1} offen sc1")
            A("s_mov_b64 exec, -1")
        h_off(A, S_T0)
        for q in range(2): P.vm(f"buffer_store_dword{'x4' if Cfg.pzw == 4 else ''} {a(PZ,Cfg.pzw)}, v{V_L16}, {S4(S_W)}, s{S_T0} offen offset:{q*1024} sc1", "pzh")
    return [dict(kind="act", emit=e, pre=["vset"])]
def q_rflag(P):
    A = P.A
    def e():
        fi_idx(A, S_T0)
        A(f"s_lshl_b32 s{S_T0}, s{S_T0}, 3")
        A(f"s_add_u32 s{S_T0}, s{S_T0}, {HF_OFF}")
        flag_store(P, 14, "pzh")
        P.flags.add("rflag")
    return [dict(kind="act", emit=e, waits="pzh", pre=["tok"])]
def q_rpoll(P, w):
    A = P.A
    d = V_P if w in "xs" else 30
    ld = f"buffer_load_dwordx2 v[{d}:{d+1}], v{V_L8}, {S4(S_W)}, s{S_QB} offen sc1"
    ex = "s_mov_b64 exec, 15" if w == "s" else "s_mov_b64 exec, 0xff" if w == "x" and Cfg.xpz == "S" else "s_mov_b32 exec_hi, 0"
    def e():
        if w == "h":
            A(f"s_lshl2_add_u32 s{S_T1}, s{S_KQ}, s{S_W4}")
            A(f"s_mul_i32 s{S_T1}, s{S_T1}, 7")
            A(f"s_lshr_b32 s{S_T1}, s{S_T1}, 1")
            A(f"s_bitcmp1_b32 s{S_G3}, 0")
            A(f"s_cselect_b32 s{S_T0}, 56, 0")
            A(f"s_add_u32 s{S_T1}, s{S_T1}, s{S_T0}")
            A(f"s_lshl_b32 s{S_T1}, s{S_T1}, 6")
            A(f"s_add_u32 s{S_QB}, s{S_T1}, {HF_OFF}")
        elif w == "s":
            A(f"s_lshr_b32 s{S_T1}, s5, 1")
            A(f"s_lshl2_add_u32 s{S_T1}, s{S_MB}, s{S_T1}")
            A(f"s_lshl2_add_u32 s{S_T1}, s{S_T1}, s{S_W4}")
            A(f"s_and_b32 s{S_T0}, s5, 1")
            A(f"s_lshl1_add_u32 s{S_T1}, s{S_T1}, s{S_T0}")
            A(f"s_lshl_b32 s{S_T1}, s{S_T1}, 5")
            A(f"s_add_u32 s{S_QB}, s{S_T1}, {HF_OFF}")
        else:
            A(f"s_lshl2_add_u32 s{S_T1}, s{S_MB}, s{S_W4}")
            A(f"s_lshl_b32 s{S_T1}, s{S_T1}, {7 if Cfg.xpz == 'S' else 8}")
            A(f"s_add_u32 s{S_QB}, s{S_T1}, {XF_OFF if Cfg.xpz == 'S' else HF_OFF}")
        A(ex)
        P.vm(ld, "rpoll" + w)
        A("s_mov_b64 exec, -1")
    def chk():
        P.wait_idx(P.idx["rpoll" + w])
        l = A.newlabel("pl"); o = A.newlabel("po")
        A(ex)
        A(f"s_mov_b32 s{S_T3}, {SPIN}")
        A.label(l)
        A(f"v_cmp_ne_u64 vcc, s[{S_TOK}:{S_TOK+1}], v[{d}:{d+1}]")
        A(f"s_cbranch_vccz {o}")
        A(f"s_sub_u32 s{S_T3}, s{S_T3}, 1")
        A(f"s_cbranch_scc1 {o}")
        A(ld)
        A("s_waitcnt vmcnt(0)")
        A(f"s_branch {l}")
        A.label(o)
        A("s_mov_b64 exec, -1")
        P.flags.add("rok" + w)
        if w == "h": P.stamp(2)
    return [dict(kind="ld", emit=e, pre=["tok"] if w in "xs" else ["rokx", ("dq", 7)])], [dict(kind="act", emit=chk, waits="rpoll" + w, pre=[] if w in "xs" else ["hst"])]

def g2order(): return [p for p in range(8) if Cfg.qord[p][1] == 0] + [p for p in range(8) if Cfg.qord[p][1] == 1]
def xr_home(g):
    if g < 4: return [("a", 224), ("a", 240), ("v", 96), ("v", 112)][g]
    if "X" in Cfg.seq1:
        s_, b = vorder()[6 + g]
        return ("a", 32*s_ + 16*b)
    return ("v", WQ + 16*g2order()[g - 4])
def xr_loads(g):
    du, b = Cfg.qord[g2order()[g]]
    k, hb = xr_home(g)
    return [(f"s_add_u32 s{S_T0}, s{S_XB4+t}, s{S_XJ+du}",
             f"buffer_load_dwordx4 {R(k,hb+4*t,4)}, v{V_L16}, {S4(S_W)}, s{S_T0} offen offset:{2048*b} {Cfg.hld}",
             ("xr", g) if t == 3 else None) for t in range(4)]
def q_xr(P, b):
    A = P.A
    def setup():
        if b: return
        A(f"v_bfe_u32 v14, v{V_L8}, 5, 2")
        A(f"v_and_b32 v15, 2, v14")
        A(f"v_add_u32 v14, v14, v15")
        A(f"v_bfe_u32 v15, v{V_L8}, 3, 2")
        A(f"v_lshl_add_u32 v14, v15, 5, v14")
        A(f"s_lshl_b32 s{S_T0}, s{S_MB}, 4")
        A(f"s_add_u32 s{S_T0}, s{S_T0}, s{S_W4}")
        A(f"s_lshl_b32 s{S_T0}, s{S_T0}, 13")
        A(f"v_lshlrev_b32 v14, 10, v14")
        A(f"v_add_u32 v{V_P+1}, s{S_T0}, v14")
    spec = []
    for g in range(4*b, 4*b + Cfg.xspec): spec += xr_loads(g)
    pre = ["rokx", ("dq", Cfg.g1pre)] if b == 0 else [("g2", 3)]
    items = [q_gate(P, f"x{b}", f"buffer_load_dword v{V_P}, v{V_P+1}, {S4(S_W)}, 0 offen offset:{2048*b} sc1", spec, pre, 4 if b else 14, setup)]
    for g in range(4*b + Cfg.xspec, 4*b + 4):
        for pt, t, tag in xr_loads(g):
            items.append(dict(kind="ld", emit=lambda pt=pt, t=t, tag=tag: (A(pt), P.vm(t, tag))))
    return items

def q_xr1(P):
    A = P.A
    def setup():
        A(f"v_bfe_u32 v14, v{V_L8}, 5, 3")
        A(f"v_bfe_u32 v15, v{V_L8}, 3, 2")
        A(f"v_lshl_add_u32 v14, v15, 5, v14")
        A(f"s_lshl_b32 s{S_T0}, s{S_MB}, 4")
        A(f"s_add_u32 s{S_T0}, s{S_T0}, s{S_W4}")
        A(f"s_lshl_b32 s{S_T0}, s{S_T0}, 13")
        A(f"v_lshlrev_b32 v14, 10, v14")
        A(f"v_add_u32 v{V_P+1}, s{S_T0}, v14")
        P.D = Cfg.D2
    spec = []
    for g in range(Cfg.xspec): spec += xr_loads(g)
    items = [q_gate(P, "x0", f"buffer_load_dword v{V_P}, v{V_P+1}, {S4(S_W)}, 0 offen sc1", spec, ["rokx", "rflag", ("dq", Cfg.g1pre)], 14, setup)]
    for g in range(Cfg.xspec, 8):
        for pt, t, tag in xr_loads(g):
            items.append(dict(kind="ld", emit=lambda pt=pt, t=t, tag=tag: (A(pt), P.vm(t, tag))))
    return items

def vorder():
    out = []; L = Cfg.vlag
    if Cfg.vrow: return [(k, b) for k in range(7) for b in range(2)]
    for k in range(7 + L):
        if k < 7: out.append((k, 0))
        if k - L >= 0: out.append((k - L, 1))
    return out
NRV = 6
def q_vdma(P, n):
    A = P.A
    s_, b = vorder()[n]
    items = []
    for q in range(4):
        def e(q=q):
            if q == 0:
                if n >= NRV: P.dwait_idx(P.didx[("vm", n - NRV)])
                A(f"s_lshr_b32 s{S_OFF2}, s{S_HS+s_}, 11")
                A(f"s_mul_i32 s{S_OFF2}, s{S_OFF2}, {64*7168}")
                A(f"s_bitcmp1_b32 s{S_HS+s_}, 10")
                A(f"s_cselect_b32 s{S_T0}, {8*7168}, 0")
                A(f"s_add_u32 s{S_OFF2}, s{S_OFF2}, s{S_T0}")
                A(f"s_add_u32 s{S_OFF2}, s{S_OFF2}, s{S_ETA}")
                if b: A(f"s_xor_b32 s{S_OFF2}, s{S_OFF2}, 128")
                A(f"s_add_u32 m0, s{S_RING}, {(n%NRV)*4096}")
                A("s_nop 0")
            P.vm(f"buffer_load_dwordx4 v{V_VD+q}, {S4(S_V)}, s{S_OFF2} offen offset:{q*1024} {Cfg.vh if b else Cfg.vm} lds", ("v", n) if q == 3 else None)
        items.append(dict(kind="ld", emit=e, pre=["vset"] + ([("vmoved", n - NRV)] if n >= NRV else [])))
    return items
def q_vmove(P, n):
    s_, b = vorder()[n]
    def e():
        P.wait_idx(P.idx[("v", n)])
        for i in range(4):
            for hf in range(2):
                P.ds(f"ds_read_b64_tr_b16 {a(32*s_+16*b+4*i+2*hf, 2)}, v{V_TR+i} offset:{(n%NRV)*4096 + hf*2048}", ("vm", n))
        P.flags.add(("vmoved", n))
    return [dict(kind="act", emit=e, waits=("v", n), pre=[("g2", n - 6)] if n >= 10 and "X" in Cfg.seq1 else [])]
def vseq(P, cnt, lag=3):
    items = []
    for _ in range(cnt):
        if P.vn >= 14: break
        items += q_vdma(P, P.vn); P.vn += 1
        while P.vmn < P.vn - lag:
            items += q_vmove(P, P.vmn); P.vmn += 1
    return items
def vflush(P):
    items = []
    while P.vmn < P.vn:
        items += q_vmove(P, P.vmn); P.vmn += 1
    return items

def lut_build(P):
    A = P.A
    SC, ZE, T = WQ + 96, WQ + 100, WQ + 104
    P.need("sz")
    if Cfg.ff: P.stamp(9)
    for b in (SC, ZE):
        A(f"v_and_b32 v{b+3}, 0xffff0000, v{b+1}")
        A(f"v_lshlrev_b32 v{b+2}, 16, v{b+1}")
        A(f"v_and_b32 v{b+1}, 0xffff0000, v{b}")
        A(f"v_lshlrev_b32 v{b}, 16, v{b}")
    fl = ["0", "1.0", "2.0", "0x40400000", "4.0", "0x40a00000", "0x40c00000", "0x40e00000"]
    PP = WQ + 64
    for u in range(4):
        I4 = range(4)
        for i in I4: A(f"v_sub_f32 v{T+i}, {fl[2*u]}, v{ZE+i}")
        for i in I4: A(f"v_sub_f32 v{T+4+i}, {fl[2*u+1]}, v{ZE+i}")
        for i in I4: pk(A, T+i, T+i, T+4+i)
        for i in I4: A(f"v_and_b32 v{T+4+i}, 0xffff0000, v{T+i}")
        for i in I4: A(f"v_lshlrev_b32 v{T+i}, 16, v{T+i}")
        for i in I4: A(f"v_mul_f32 v{T+4+i}, v{T+4+i}, v{SC+i}")
        for i in I4: A(f"v_mul_f32 v{T+i}, v{T+i}, v{SC+i}")
        for i in I4: pk(A, PP+4*u+i, T+i, T+4+i)
        P.pump(2, True)
    A(f"s_mov_b32 s{S_PS0}, 0x06040200")
    A(f"s_mov_b32 s{S_PS1}, 0x07050301")
    for i in range(4):
        for hh in range(2):
            A(f"v_perm_b32 v{LUT+4*i+hh}, v{PP+8*hh+4+i}, v{PP+8*hh+i}, s{S_PS0}")
            A(f"v_perm_b32 v{LUT+4*i+2+hh}, v{PP+8*hh+4+i}, v{PP+8*hh+i}, s{S_PS1}")
    A(f"s_mov_b32 s{S_PS0}, 0x05010400")
    A(f"s_mov_b32 s{S_PS1}, 0x07030602")
    P.flags.add("lut")

def dequant(P, p):
    A = P.A
    du, b = Cfg.qord[p]
    if du == 0: P.until("tok")
    if Cfg.ff and p == 0: P.stamp(10)
    P.need(("q", p))
    if Cfg.ff and p < 3: P.stamp(11 + p)
    rb = RAW + 32*p if du == 0 else RAW
    W = WQ + 16*p
    r = lambda j, i: rb + 4*j + i
    SEL = RAW + 64 + 16*(p & 1); TM = SEL + 8
    def pchk(X):
        for k in range(8): X(f"v_xor_b32 v{SEL+k}, s{S_PAT+(k&3)}, v{W+8+k}")
        X(f"v_or3_b32 v{V_CHK}, v{SEL}, v{SEL+1}, v{SEL+2}")
        X(f"v_or3_b32 v{V_CHK+1}, v{SEL+3}, v{SEL+4}, v{SEL+5}")
        X(f"v_or3_b32 v{V_CHK}, v{V_CHK}, v{SEL+6}, v{SEL+7}")
        X(f"v_or_b32 v{V_CHK}, v{V_CHK}, v{V_CHK+1}")
        X(f"v_and_b32 v{V_CHK}, s{S_MSK}, v{V_CHK}")
        X(f"v_cmp_ne_u32 vcc, 0, v{V_CHK}")
    if du == 0:
        for hh in range(2):
            for i in range(4):
                A(f"v_cvt_pk_u16_u32 v{W+4*i+2*hh}, v{r(4*hh,i)}, v{r(4*hh+2,i)}")
                A(f"v_cvt_pk_u16_u32 v{W+4*i+2*hh+1}, v{r(4*hh+1,i)}, v{r(4*hh+3,i)}")
            P.pump(1, True)
        A(f"v_or3_b32 v{V_CHK}, v{W}, v{W+1}, v{W+2}")
        A(f"v_or3_b32 v{V_CHK+1}, v{W+3}, v{W+4}, v{W+5}")
        for k in range(6, 14, 4):
            A(f"v_or3_b32 v{V_CHK}, v{V_CHK}, v{W+k}, v{W+k+1}")
            A(f"v_or3_b32 v{V_CHK+1}, v{V_CHK+1}, v{W+k+2}, v{W+k+3}")
        A(f"v_or3_b32 v{V_CHK}, v{V_CHK}, v{W+14}, v{W+15}")
        A(f"v_or_b32 v{V_CHK}, v{V_CHK}, v{V_CHK+1}")
        A(f"v_and_b32 v{V_CHK}, 0xfff8fff8, v{V_CHK}")
        A(f"v_cmp_ne_u32 vcc, 0, v{V_CHK}")
        for k in range(8): A(f"v_lshl_or_b32 v{SEL+k}, v{W+2*k+1}, 8, v{W+2*k}")
        A(f"s_lshl2_add_u32 s{S_T0}, s{S_XJ}, s{S_PKB}")
        A(f"s_cbranch_vccnz dqg{p}{SFX[0]}")
        for k in range(8): A(f"v_or_b32 v{rb+8+k}, s{S_PAT+(k&3)}, v{SEL+k}")
        for k in range(2): P.vm(f"buffer_store_dwordx4 {v(rb+8+4*k,4)}, v{V_L16}, {S4(S_W)}, s{S_T0} offen offset:{2048*b+1024*k} sc1")
    else:
        pchk(A)
        if not Cfg.nock: A(f"s_cbranch_vccnz dqs{p}{SFX[0]}")
        A.label(f"dqf{p}{SFX[0]}")
        C = Asm()
        C.label(f"dqs{p}{SFX[0]}")
        C(f"s_mov_b32 s{S_T3}, {Cfg.pspin}")
        C.label(f"dql{p}{SFX[0]}")
        for t in pk_loads(p): C(t)
        C("s_waitcnt vmcnt(0)")
        pchk(C)
        C(f"s_cbranch_vccz dqf{p}{SFX[0]}")
        C(f"s_sub_u32 s{S_T3}, s{S_T3}, 1")
        C(f"s_cbranch_scc0 dql{p}{SFX[0]}")
        C(f"s_branch dqg{p}{SFX[0]}")
        WARM.append(C.text())
    for hh in range(2):
        for i in range(4):
            d = W + 4*i + 2*hh
            A(f"v_perm_b32 v{d+1}, v{LUT+4*i+1}, v{LUT+4*i}, v{SEL+2*i+hh}")
            A(f"v_perm_b32 v{TM+4*hh+i}, v{LUT+4*i+3}, v{LUT+4*i+2}, v{SEL+2*i+hh}")
        for i in range(4):
            d = W + 4*i + 2*hh
            A(f"v_perm_b32 v{d}, v{TM+4*hh+i}, v{d+1}, s{S_PS0}")
            A(f"v_perm_b32 v{d+1}, v{TM+4*hh+i}, v{d+1}, s{S_PS1}")
    A.label(f"dqr{p}{SFX[0]}")
    P.flags.add(("dq", p))
    P.pump(2, True)
    C = Asm()
    C.label(f"dqg{p}{SFX[0]}")
    SC = W; ZE = W + 4
    if du:
        for j in range(8):
            if j == 0:
                C(f"s_mul_i32 s{S_T0}, s{S_XJ+du}, 448")
                if b: C(f"s_add_u32 s{S_T0}, s{S_T0}, {64*14336}")
            else: C(f"s_add_u32 s{S_T0}, s{S_T0}, {(13 if j == 4 else 1)*14336}")
            C(f"buffer_load_dwordx4 {v(rb+4*j,4)}, v{V_QO}, {S4(S_Q)}, s{S_T0} offen")
    C(f"v_bfe_u32 v{V_CHK}, v{V_L8}, 3, 4")
    C(f"v_lshlrev_b32 v{V_CHK}, 3, v{V_CHK}")
    C(f"s_lshl_b32 s{S_T0}, s{S_CB}, 7")
    C(f"buffer_load_dwordx2 v[{SC}:{SC+1}], v{V_CHK}, {S4(S_S)}, s{S_T0} offen")
    C(f"buffer_load_dwordx2 v[{ZE}:{ZE+1}], v{V_CHK}, {S4(S_Z)}, s{S_T0} offen")
    C("s_waitcnt vmcnt(0)")
    for b in (SC, ZE):
        C(f"v_and_b32 v{b+3}, 0xffff0000, v{b+1}")
        C(f"v_lshlrev_b32 v{b+2}, 16, v{b+1}")
        C(f"v_and_b32 v{b+1}, 0xffff0000, v{b}")
        C(f"v_lshlrev_b32 v{b}, 16, v{b}")
    for q in range(4):
        r0 = rb + 8*q; r1 = r0 + 4
        for i in range(4):
            C(f"v_cvt_f32_i32 v{r0+i}, v{r0+i}")
            C(f"v_cvt_f32_i32 v{r1+i}, v{r1+i}")
            pk(C, r0+i, r0+i, r1+i)
            C(f"v_and_b32 v{r1+i}, 0xffff0000, v{r0+i}")
            C(f"v_lshlrev_b32 v{r0+i}, 16, v{r0+i}")
            C(f"v_sub_f32 v{r1+i}, v{r1+i}, v{ZE+i}")
            C(f"v_sub_f32 v{r0+i}, v{r0+i}, v{ZE+i}")
            pk(C, r0+i, r0+i, r1+i)
            C(f"v_and_b32 v{r1+i}, 0xffff0000, v{r0+i}")
            C(f"v_lshlrev_b32 v{r0+i}, 16, v{r0+i}")
            C(f"v_mul_f32 v{r1+i}, v{r1+i}, v{SC+i}")
            C(f"v_mul_f32 v{r0+i}, v{r0+i}, v{SC+i}")
            pk(C, r0+i, r0+i, r1+i)
    for q in range(4):
        for i in range(4): C(f"v_mov_b32 v{W+4*i+q}, v{rb+8*q+i}")
    C(f"s_branch dqr{p}{SFX[0]}")
    COLD.append(C.text())

def g2(P):
    A = P.A
    ACC = 32
    red_addrs(A, V_RA)
    A(f"s_and_b32 s{S_T1}, s{S_G3}, 1")
    A(f"s_lshl_b32 s{S_T1}, s{S_T1}, 3")
    A(f"s_lshr_b32 s{S_T0}, s{S_W4}, 1")
    A(f"s_add_u32 s{S_T1}, s{S_T1}, s{S_T0}")
    for p in range(4):
        A(f"s_add_u32 s{S_T0}, s{S_KQ}, {1+p}")
        A(f"s_and_b32 s{S_T0}, s{S_T0}, 3")
        A(f"s_lshl1_add_u32 s{S_T0}, s{S_T0}, s{S_T1}")
        for a_ in range(2):
            if a_: A(f"s_xor_b32 s{S_T0}, s{S_T0}, 1")
            A(f"s_mul_i32 s{S_T2}, s{S_T0}, {112*1024}")
            A(f"s_add_u32 s{S_T2}, s{S_T2}, {H_OFF}")
            A(f"v_add_u32 v{V_AO+2*p+a_}, s{S_T2}, v{V_L16}")
    A(f"v_bfe_u32 v14, v{V_L8}, 3, 4")
    A(f"v_lshrrev_b32 v15, 7, v{V_L8}")
    A(f"v_mul_u32_u24 v{V_OUT}, 7168, v14")
    A(f"v_lshl_add_u32 v{V_OUT}, v15, 4, v{V_OUT}")
    A(f"v_bfe_u32 v14, v{V_L8}, 3, 3")
    A(f"v_lshrrev_b32 v15, 6, v{V_L8}")
    A(f"v_min_u32 v15, 6, v15")
    A(f"v_mul_u32_u24 v14, 112, v14")
    A(f"v_add_u32 v14, v14, v15")
    A(f"s_lshl2_add_u32 s{S_T0}, s{S_KQ}, s{S_W4}")
    A(f"s_mul_i32 s{S_T0}, s{S_T0}, 7")
    A(f"s_bitcmp1_b32 s{S_G3}, 0")
    A(f"s_cselect_b32 s{S_T1}, {8*112}, 0")
    A(f"s_add_u32 s{S_T0}, s{S_T0}, s{S_T1}")
    A(f"s_add_u32 s{S_T0}, s{S_T0}, {H_OFF >> 10}")
    A(f"v_add_u32 v14, s{S_T0}, v14")
    A(f"v_lshlrev_b32 v{V_OUT+1}, 10, v14")
    od = g2order()
    def ck(g):
        P.need(("xr", g))
        k, hb = xr_home(g)
        rl = []
        for pt, t, tag in xr_loads(g): rl += [pt, t]
        check(P, [(k, hb + 4*t) for t in range(4)], rl)
    for g in range(8):
        p = od[g]
        X1 = "X" in Cfg.seq1
        if g == 0 or (g == 4 and not X1): ck(g)
        k, b = xr_home(g)
        for t in (1, 2, 3, 0):
            for i in range(4):
                mfma(A, v(ACC+16*t+4*i, 4), v(WQ+16*p+4*i, 4), R(k, b+4*t, 4), g == 0)
                if i % 2 == 1: P.pump(1, True)
                if g == 7 and t in (3, 0):
                    for tt in ((1,) if t == 3 else (2,)):
                        P.ds(f"ds_write_b128 v{V_RA}, {v(ACC+16*tt+4*i,4)} offset:{BUF + (tt-1)*4096 + i*1024}")
            if t == 3 and g != 7 and (g != 3 or X1): ck(g + 1)
        P.flags.add(("g2", g))
    P.stamp(8)
    for i in range(4):
        P.ds(f"ds_write_b128 v{V_RA}, {v(ACC+48+4*i,4)} offset:{BUF + 2*4096 + i*1024}")
    assert "rflag" in P.flags
    h_off(A, S_OFF)
    P.dall()
    A("s_barrier")
    R0 = 128
    for t in range(3):
        for i in range(4):
            P.ds(f"ds_read_b128 {v(R0+16*t+4*i,4)}, v{V_RA+1+t} offset:{BUF + t*4096 + i*1024}", ("r2", t))
    P.dneed(("r2", 0)); add2(A, R0, R0, ACC, 16)
    P.dneed(("r2", 2)); add2(A, R0+16, R0+16, R0+32, 16); add2(A, R0, R0, R0+16, 16)
    PK = R0 + 16
    for f in range(2):
        for q in range(4):
            r = 2*f + (q >> 1); i = 2*(q & 1)
            pk(A, PK + 4*f + q, R0 + 4*i + r, R0 + 4*(i+1) + r)
        unpoison(A, PK + 4*f)
        P.vm(f"buffer_store_dwordx4 {v(PK+4*f,4)}, v{V_L16}, {S4(S_W)}, s{S_OFF} offen offset:{1024*f} sc1", "hst")
    P.flags.add("hst")
    P.stamp(5)

G3STEPS = [(p, s_) for p in range(4) for s_ in range(7)]
NH = 14
def h_home(n):
    k = n % NH
    return ("v", 176 + 8*k) if k < 10 else ("a", 224 + 8*(k - 10))
QA = lambda k: 32 + 16*k
ACCQ = {0: [0, 1, 2, 3], 1: [4, 5, 6, 7], 2: [0, 1, 2, 3], 3: [4, 5, 6, 7]}
DUMP = {0: 0, 1: 12288, 2: 0, 3: 12288}
RX = 176
def h_loads(n):
    p, s_ = G3STEPS[n]
    k, b = h_home(n)
    return [(None, f"buffer_load_dwordx4 {R(k,b+4*a_,4)}, v{V_AO+2*p+a_}, {S4(S_W)}, s{S_HS+s_} offen {Cfg.hld}", ("h", n) if a_ else None) for a_ in range(2)]
def q_h(P, n):
    return [dict(kind="ld", emit=lambda t=t, tag=tag: P.vm(t, tag), pre=([("g3", n - NH)] if n >= NH else [])) for _, t, tag in h_loads(n)]
def q_hgate(P):
    spec = []
    for n in range(Cfg.hspec): spec += h_loads(n)
    return [q_gate(P, "h", f"buffer_load_dword v{V_P}, v{V_OUT+1}, {S4(S_W)}, 0 offen sc1", spec, ["hst", "rokh"], 6)]
RXB = [160, 184, 208]
def tpos(e): return 4*(e // 3) + e % 3
TAGS = [3, 7, 11, 15, 19, 21]
def px_ops(op, base, so):
    out = [f"buffer_{op}_dwordx4 {v(base+4*i,4)}, v{V_L16}, {S4(S_W)}, s{so} offen offset:{1024*i} sc1" for i in range(4)]
    out.append(f"buffer_{op}_dwordx4 {v(base+16,4)}, v{V_L16}, {S4(S_W)}, s{so+1} offen sc1")
    out.append(f"buffer_{op}_dwordx2 {v(base+20,2)}, v{V_L8}, {S4(S_W)}, s{so+1} offen offset:1024 sc1")
    return out
S_RXO = 36

def g3(P):
    A = P.A
    P.until("hok")
    P.g3 = True
    P.D = Cfg.D3
    vo = vorder()
    sd = Side(P)
    def dump(p):
        rec = Rec(); px_off(rec, S_OFF, p, True); rec(f"s_add_u32 s{S_OFF+1}, s{S_OFF}, 4096")
        sal = rec.l; assert len(sal) == 8
        for t in (1, 2, 3):
            for i in range(4):
                sd.add(lambda t=t, i=i: P.ds(f"ds_write_b128 v{V_RA}, {v(QA(ACCQ[p][t])+4*i,4)} offset:{DUMP[p] + (t-1)*4096 + i*1024}", ("dump", p)), 2)
                if p < 3:
                    if sal: sd.add(lambda t=sal.pop(0): A(t)); sd.add(lambda t=sal.pop(0): A(t))
                    elif Cfg.dwsp[p]: sd.wait(Cfg.dwsp[p])
        if p < 3: sd.wait(Cfg.barw)
    def bar(): sd.add(lambda: (P.dall(), A("s_nop 0" if "B" in Cfg.skip else "s_barrier")), 2)
    def lreads(p, T):
        for t in range(3):
            for i in range(4):
                sd.add(lambda t=t, i=i: P.ds(f"ds_read_b128 {v(T[t]+4*i,4)}, v{V_RA+1+t} offset:{DUMP[p] + t*4096 + i*1024}", ("r3", p, t)), 2)
    def reduce_send(p):
        own = QA(ACCQ[p][0]); T = [QA(k) for k in ACCQ[p][1:]]
        bar()
        lreads(p, T)
        sd.add(lambda: P.dneed(("r3", p, 0)))
        for e in range(16): sd.addf(own+e, own+e, T[0]+e)
        sd.add(lambda: P.dneed(("r3", p, 2)))
        for e in range(16): sd.addf(T[2]+e, T[1]+e, T[2]+e)
        st = px_ops("store", T[0], S_OFF)
        for k in range(6):
            for e in range(3*k, min(3*k+3, 16)): sd.addf(T[0]+tpos(e), own+e, T[2]+e)
            sd.add(lambda k=k: A(f"v_mov_b32 v{T[0]+TAGS[k]}, s{S_TOK}"))
            sd.add(lambda k=k: P.vm(st[k], ("pst", p)), 2)
    def rx(p):
        for t in px_ops("load", RXB[p], S_RXO + 2*p): sd.add(lambda t=t: P.vm(t, ("rx", p)), 2)
    def rxck(p):
        P.need(("rx", p))
        if Cfg.nock: return
        l = A.newlabel("rk"); b = RXB[p]
        A(f"s_mov_b32 s{S_T3}, {SPIN}")
        A.label(l)
        for k in TAGS: A(f"v_cmpx_eq_u32 s{S_TOK}, v{b+k}")
        A("s_cmp_eq_u64 exec, -1")
        A("s_mov_b64 exec, -1")
        A(f"s_cbranch_scc1 {l}o")
        for t in px_ops("load", b, S_RXO + 2*p): A(t)
        A(f"s_sub_u32 s{S_T3}, s{S_T3}, 1")
        A("s_waitcnt vmcnt(0)")
        A(f"s_cbranch_scc0 {l}")
        A.label(l + "o")
    def tsetup():
        px_off(A, S_RXO, 0, False)
        for k in range(1, 6): A(f"s_add_u32 s{S_RXO+k}, s{S_RXO}, {(k>>1)*4*PXW + (k&1)*4096}")
        A(f"s_and_b32 s{S_T0}, s{S_G3}, 1")
        A(f"s_lshl2_add_u32 s{S_T0}, s{S_T0}, s{S_KQ}")
        A(f"s_lshr_b32 s{S_T1}, s{S_W4}, 1")
        A(f"s_lshl1_add_u32 s{S_T0}, s{S_T0}, s{S_T1}")
        A(f"s_mul_i32 s{S_T0}, s{S_T0}, {16*7168}")
        A(f"s_lshr_b32 s{S_T1}, s{S_G3}, 1")
        A(f"s_lshl_b32 s{S_T1}, s{S_T1}, 8")
        A(f"s_add_u32 s{S_T0}, s{S_T0}, s{S_T1}")
        A(f"s_add_u32 s{S_XB4+3}, s{S_T0}, s{S_ETA}")
    def ck(n, s2):
        P.need(("h", n), s2 is None)
        k, hb = h_home(n)
        check(P, [(k, hb), (k, hb + 4)], [t for _, t, _ in h_loads(n)], sd=s2)
    def vmv(m, nb=False):
        if m not in P.VM: return
        if nb and not (("v", m) in P.idx and P.idx[("v", m)] < P.done): return
        P.issue(("v", m)); P.VM.pop(m)["emit"]()
    P.pump(Cfg.D3 - 2*Cfg.hspec, True)
    for m in sorted(P.VM): vmv(m, True)
    tsetup()
    ck(0, None)
    for n, (p, s_) in enumerate(G3STEPS):
        if (p, s_) == (3, Cfg.rx01): rx(0); rx(1)
        for b in range(2):
            m = vo.index((s_, b))
            vmv(m)
            P.until(("vmoved", m)); P.dwait_idx(P.didx[("vm", m)])
        k, hb = h_home(n)
        sd.drain_hi()
        for t in (1, 2, 3, 0):
            if s_ == 6 and t == 3:
                assert p == 3 or not sd.q, (p, len(sd.q))
                sd.drain(); dump(p)
                if p < 3: reduce_send(p)
            for i in range(4):
                mfma(A, v(QA(ACCQ[p][t])+4*i, 4), a(32*s_+16*(t & 1)+4*i, 4), R(k, hb+4*(t >> 1), 4), s_ == 0)
                if t == 2 and i == 3 and n < 27: ck(n + 1, sd)
                if t == 3 and i == 1 and n < 6:
                    for b in range(2): vmv(vo.index((s_ + 1, b)))
                    for m in sorted(P.VM): vmv(m, True)
                sd.gap(2 if s_ == 6 or p == 0 else Cfg.bud[p - 1])
        P.flags.add(("g3", n))
        if Cfg.fine >= 0 and 0 <= n - Cfg.fine < 8: P.stamp(8 + n - Cfg.fine, True)
        if n in (6, 13, 20, 27): P.stamp(9 + (6, 13, 20, 27).index(n))
    rx(2); bar()
    T = [QA(1), QA(2), QA(3)]; own = QA(4)
    lreads(3, T)
    sd.drain()
    rxck(0); rxck(1)
    for e in range(16): A(f"v_add_f32 v{QA(0)+e}, v{RXB[0]+tpos(e)}, v{RXB[1]+tpos(e)}")
    P.dneed(("r3", 3, 0)); add2(A, own, own, T[0], 16)
    P.dneed(("r3", 3, 2)); add2(A, T[1], T[1], T[2], 16); add2(A, own, own, T[1], 16)
    add2(A, own, own, QA(0), 16)
    rxck(2)
    P.stamp(13)
    for s_ in range(2):
        for e in range(8*s_, 8*s_+8): A(f"v_add_f32 v{own+e}, v{own+e}, v{RXB[2]+tpos(e)}")
        for q in range(4): pk(A, T[0]+4*s_+q, own+8*s_+2*q, own+8*s_+2*q+1)
        P.vm(f"buffer_store_dwordx4 {v(T[0]+4*s_,4)}, v{V_OUT}, {S4(S_O)}, s{S_XB4+3} offen offset:{64*s_} {Cfg.ost}")
    assert not P.Q, P.Q[0]

TO = (2, 3, 1, 0)
def blocks3(): return [(p, s_, t) for p in range(4) for t in TO for s_ in range(7)]
def frags3(): return [(p, s_, a_) for p in range(4) for a_ in (1, 0) for s_ in range(7)]
def fhome(f):
    p, s_, a_ = f
    k, b = h_home(7*p + s_)
    return k, b + 4*a_
def fload(f):
    p, s_, a_ = f
    k, b = fhome(f)
    return f"buffer_load_dwordx4 {R(k,b,4)}, v{V_AO+2*p+a_}, {S4(S_W)}, s{S_HS+s_} offen {Cfg.hld}"
def acc3(p, t): return QA(2*(p & 1) + (TO.index(t) & 1))
SEND = 96
RX2 = [114, 132, 150, 176]
DSL = [36864, BUF, BUF + 4096]
def tsetup(A):
    px_off(A, S_RXO, 0, False)
    for k in range(1, 3): A(f"s_add_u32 s{S_RXO+k}, s{S_RXO}, {k*4*PXW}")
    A(f"s_and_b32 s{S_T0}, s{S_G3}, 1")
    A(f"s_lshl2_add_u32 s{S_T0}, s{S_T0}, s{S_KQ}")
    A(f"s_lshr_b32 s{S_T1}, s{S_W4}, 1")
    A(f"s_lshl1_add_u32 s{S_T0}, s{S_T0}, s{S_T1}")
    A(f"s_mul_i32 s{S_T0}, s{S_T0}, {16*7168}")
    A(f"s_lshr_b32 s{S_T1}, s{S_G3}, 1")
    A(f"s_lshl_b32 s{S_T1}, s{S_T1}, 8")
    A(f"s_add_u32 s{S_T0}, s{S_T0}, s{S_T1}")
    A(f"s_add_u32 s{S_XB4+3}, s{S_T0}, s{S_ETA}")
    for p in range(3):
        px_off(A, S_SO + p, p, True)
    A(f"v_lshrrev_b32 v{V_L4}, 1, v{V_L8}")
    A(f"v_add_u32 v{V_L4}, 4096, v{V_L4}")
S_SO = 39
V_L4 = 12
def cx_ops(op, base, so):
    out = [f"buffer_{op}_dwordx4 {v(base+4*i,4)}, v{V_L16}, {S4(S_W)}, s{so} offen offset:{1024*i} sc1" for i in range(4)]
    out.append(f"buffer_{op}_dword v{base+16}, v{V_L4}, {S4(S_W)}, s{so} offen sc1")
    return out
def csum(d, b, k): return f"v_add3_u32 v{d}, v{b+2*k}, v{b+2*k+1}, " + (f"v{d}" if k else f"s{S_TOK}")
def q_hgate2(P):
    F = frags3()
    spec = [(None, fload(f), ("hf", f)) for f in F[:Cfg.hsp]]
    def mid():
        tsetup(P.A)
        if Cfg.gmid:
            for m in sorted(P.VM):
                if ("v", m) in P.idx: P.VM.pop(m)["emit"]()
    return [q_gate(P, "h", f"buffer_load_dword v{V_P}, v{V_OUT+1}, {S4(S_W)}, 0 offen sc1", spec, ["hst", "rokh"], 6, None, mid)]
def q_g3rest(P):
    F = frags3(); Q = []
    lu = {(p, s_, t >> 1): j for j, (p, s_, t) in enumerate(blocks3())}
    for j, f in enumerate(F):
        if j < Cfg.hsp: continue
        if j == Cfg.hsp + Cfg.vpos: Q += [(-1, x) for x in vseq(P, 14, 99)]
        pv = (f[0] - 2, f[1], f[2])
        Q.append((lu.get(pv, -2) + 1, dict(kind="ld", emit=lambda f=f: P.vm(fload(f), ("hf", f)), pre=[("free", pv)] if f[0] >= 2 else [])))
    for r, b in enumerate([Cfg.rx0b, Cfg.rx1b, Cfg.rx2b] + ([Cfg.rxB] if Cfg.rxB else [])):
        for k, t in enumerate(cx_ops("load", RX2[r], S_RXO + min(r, 2))):
            Q.append((b + k, dict(kind="ld", emit=lambda t=t, r=r: P.vm(t, ("rx", r)), pre=[("blk", b)])))
    Q.sort(key=lambda x: x[0])
    return [x for _, x in Q]
class Side2:
    def __init__(self, P): self.q = deque(); self.hi = deque(); self.skip = 0; self.P = P; self.g = 0; self.lastv = -9; self.nv = P.nvm
    def add(self, fn, cost=1, vm=False): self.q.append((cost, fn, vm))
    def wait(self, n): self.q.append((-n, None, False))
    def when(self, flag): self.q.append((0, flag, None))
    def note(self):
        if self.P.nvm != self.nv: self.nv = self.P.nvm; self.lastv = self.g
    def gap(self, budget):
        self.g += 1
        b0 = budget
        while budget > b0 - 2 and self.hi:
            self.hi.popleft()(); budget -= 1
        self.note()
        urgent = any(x[2] for x in list(self.q)[:4])
        if budget > 0 and not urgent and self.g - self.lastv >= Cfg.vp:
            if self.P.step(True) is not None: budget -= 1
            self.note()
        if self.skip: self.skip -= 1; return
        while self.q:
            c, f, vm_ = self.q[0]
            if vm_ is None:
                if f not in self.P.flags: break
                self.q.popleft(); continue
            if c < 0:
                self.q.popleft(); self.skip = -c - 1; break
            if c > budget or (vm_ and self.g - self.lastv < vm_): break
            self.q.popleft(); f(); budget -= c
            self.note()
    def drain_hi(self):
        while self.hi: self.hi.popleft()()
    def drain(self, upto=None):
        self.drain_hi(); self.skip = 0
        while self.q and (upto is None or upto not in self.P.flags):
            c, f, vm_ = self.q.popleft()
            if vm_ is None: assert f in self.P.flags, f
            elif c >= 0: f()
def g3b(P):
    A = P.A
    P.until("hok")
    P.g3 = True
    P.D = Cfg.D3
    vo = vorder(); B = blocks3(); F = frags3()
    sd = Side2(P)
    fu = {}; lu = {}
    for j, (p, s_, t) in enumerate(B):
        fu.setdefault((p, s_, t >> 1), j); lu[(p, s_, t >> 1)] = j
    G = []
    for k in range(0, 56, 7):
        for n in (Cfg.ck0 if k == 0 else Cfg.ck1):
            G.append(F[k:k+n]); k += n
    assert sum(map(len, G)) == 56
    gat = {}
    for g in G: gat.setdefault(max(fu[g[0]] - Cfg.cka, -1), []).append(g)
    def ck(g, s2):
        for f in g: P.issue(("hf", f))
        P.need(("hf", g[-1]), False)
        check(P, [fhome(f) for f in g], [fload(f) for f in g], sd=s2)
    def dump(p, k):
        t = TO[k]; X = acc3(p, t)
        if Cfg.dw64:
            for i in range(8):
                sd.add(lambda i=i: P.ds(f"ds_write_b64 v{V_RA}, {v(X+2*i,2)} offset:{DSL[k] + (i>>1)*1024 + (i&1)*8}", ("dump", p, k)))
                sd.wait(Cfg.dw64 if i < 7 else Cfg.barw)
        else:
          for i in range(4):
            sd.add(lambda i=i: P.ds(f"ds_write_b128 v{V_RA}, {v(X+4*i,4)} offset:{DSL[k] + i*1024}", ("dump", p, k)))
            sd.wait(Cfg.dwp if i < 3 else Cfg.barw)
        sd.add(lambda: (P.dall(), A("s_nop 0" if "B" in Cfg.skip else "s_barrier")), 2)
        src = [TO[0] ^ TO[2], TO[1], TO[2]][k]
        for i in range(4):
            sd.add(lambda i=i: P.ds(f"ds_read_b128 {v(X+4*i,4)}, v{V_RA+src} offset:{DSL[k] + i*1024}", ("r3", p, k)))
            sd.wait(1)
        sd.add(lambda: P.flags.add(("rd3", p, k)), 0)
        if k < 2 or p == 3: return
        own = acc3(p, 0)
        sd.when(("own", p))
        sd.add(lambda: P.dneed(("r3", p, 2)))
        st = cx_ops("store", SEND, S_SO + p)
        for c in range(4):
            for e in range(4*c, 4*c+4): sd.add(lambda e=e: A(f"v_add_f32 v{SEND+e}, v{own+e}, v{X+e}"))
            sd.add(lambda c=c: P.vm(st[c], ("pst", p)), 1, Cfg.vps[p])
            if Cfg.csl == 0 or c == 3:
                for k2 in range(0 if Cfg.csl else 2*c, 2*c+2): sd.add(lambda k2=k2: A(csum(SEND+16, SEND, k2)))
        sd.add(lambda: P.vm(st[4], ("pst", p)), 1, Cfg.vps[p])
        sd.add(lambda: P.flags.add(("sent", p)), 0)
    def rxtest(b):
        for k in range(8): A(csum(b+17, b, k))
        A(f"v_cmp_ne_u32 vcc, v{b+17}, v{b+16}")
    def rxck(r):
        P.need(("rx", r), False)
        if Cfg.nock: return
        l = A.newlabel("rk"); b = RX2[r]
        A(f"s_mov_b32 s{S_T3}, {SPIN}")
        A.label(l)
        rxtest(b)
        A(f"s_cbranch_vccz {l}o")
        for t in cx_ops("load", b, S_RXO + min(r, 2)): A(t)
        A(f"s_sub_u32 s{S_T3}, s{S_T3}, 1")
        A("s_waitcnt vmcnt(0)")
        A(f"s_cbranch_scc0 {l}")
        A.label(l + "o")
    def vmv(m, nb=False):
        if m not in P.VM: return
        if nb and not (("v", m) in P.idx and P.idx[("v", m)] < P.done): return
        P.issue(("v", m)); P.VM.pop(m)["emit"]()
    P.pump(Cfg.burst, True)
    for m in sorted(P.VM): vmv(m, True)
    for g in gat.get(-1, []): ck(g, None)
    late = 0
    for j, (p, s_, t) in enumerate(B):
        P.flags.add(("blk", j))
        k = TO.index(t)
        if p == 0:
            m = vo.index((s_, t & 1))
            vmv(m)
            P.until(("vmoved", m)); P.dwait_idx(P.didx[("vm", m)])
        if (p, s_, t >> 1) in [g[0] for g in G] and fu[(p, s_, t >> 1)] == j: sd.drain_hi()
        if s_ == 0:
            if k: dump(p, k - 1)
            elif p: P.flags.add(("own", p - 1))
            if k >= 2:
                if ("rd3", p, k - 2) not in P.flags: late += 1
                sd.drain(("rd3", p, k - 2)); P.dneed(("r3", p, k - 2))
            elif p >= 2: assert ("sent", p - 2) in P.flags
        kk, hb = fhome((p, s_, t >> 1))
        for i in range(4):
            mfma(A, v(acc3(p, t)+4*i, 4), a(32*s_+16*(t & 1)+4*i, 4), R(kk, hb, 4), s_ == 0 and k < 2)
            if i == 0:
                for g in gat.get(j, []): ck(g, sd)
            if i == 1 and p == 0:
                for jj in (j + 2, j + 3):
                    if B[jj][0] == 0: vmv(vo.index((B[jj][1], B[jj][2] & 1)))
                for m in sorted(P.VM): vmv(m, True)
            if i == 3 and lu[(p, s_, t >> 1)] == j: P.flags.add(("free", (p, s_, t >> 1)))
            sd.gap(Cfg.b3[p] if k == 0 else 2)
        if j % 4 == 3:
            n = j // 4
            if Cfg.fine >= 0 and 0 <= n - Cfg.fine < 8: P.stamp(8 + n - Cfg.fine, True)
            if n in (6, 13, 20, 27): P.stamp(9 + (6, 13, 20, 27).index(n))
    assert not late
    for j in range(112, 130): P.flags.add(("blk", j))
    while P.Q: assert P.step() is not None
    sd.drain()
    own = acc3(3, 0); X = acc3(3, TO[2]); TP = QA(0)
    rxck(0)
    if Cfg.tst: P.need(("rx", 1), False); P.stamp(8)
    rxck(1)
    if Cfg.tst: P.stamp(14)
    add2(A, TP, RX2[0], RX2[1], 16)
    P.dneed(("r3", 3, 2))
    add2(A, own, own, X, 16)
    add2(A, own, own, TP, 16)
    def fin(b):
        for s_ in range(2):
            add2(A, own+8*s_, own+8*s_, b+8*s_, 8)
            for q in range(4): pk(A, TP+4*s_+q, own+8*s_+2*q, own+8*s_+2*q+1)
            A(f"buffer_store_dwordx4 {v(TP+4*s_,4)}, v{V_OUT}, {S4(S_O)}, s{S_XB4+3} offen offset:{64*s_} {Cfg.ost}")
    if not Cfg.rxB:
        if Cfg.tst: P.need(("rx", 2), False); P.stamp(15)
        rxck(2)
        P.stamp(13)
        fin(RX2[2])
        return
    l = A.newlabel("rz")
    A(f"s_mov_b32 s{S_T3}, {SPIN}")
    A.label(l)
    A("s_waitcnt vmcnt(5)")
    rxtest(RX2[2])
    A(f"s_cbranch_vccz {l}a")
    for t in cx_ops("load", RX2[2], S_RXO + 2): A(t)
    A("s_waitcnt vmcnt(5)")
    rxtest(RX2[3])
    A(f"s_cbranch_vccz {l}b")
    for t in cx_ops("load", RX2[3], S_RXO + 2): A(t)
    A(f"s_sub_u32 s{S_T3}, s{S_T3}, 1")
    A(f"s_cbranch_scc0 {l}")
    A.label(l + "b")
    P.stamp(13)
    fin(RX2[3])
    A("s_branch kfin")
    A.label(l + "a")
    P.stamp(13)
    fin(RX2[2])

def prog_C(A):
    P = Prog(A); P.vn = 0; P.vmn = 0; P.vlast = -9
    A.label("cls_C" + SFX[0])
    x8, slot = S_T2, S_T3
    T = WQ
    A(f"s_lshl2_add_u32 s{S_T0}, s{slot}, s{S_W4}")
    sm = Cfg.smap
    nx = 64 >> sm
    A(f"v_lshrrev_b32 v{T}, {1+sm}, v0")
    A(f"v_lshlrev_b32 v{T}, 11, v{T}")
    A(f"v_and_b32 v{T+1}, {(2 << sm) - 1}, v0")
    A(f"v_lshl_add_u32 v{T}, v{T+1}, 7, v{T}")
    A(f"v_lshlrev_b32 v{T+1}, 7, v0")
    A(f"s_lshl_b32 s{S_OFF}, s{S_T0}, 13")
    if sm:
        A(f"s_and_b32 s{S_T1}, s{x8}, {(1 << sm) - 1}")
        A(f"s_lshl_b32 s{S_T1}, s{S_T1}, {19 - sm}")
        A(f"s_add_u32 s{S_OFF}, s{S_OFF}, s{S_T1}")
    A(f"s_sub_u32 s{S_T1}, s{S_T0}, {nx}")
    A(f"s_lshl_b32 s{S_OFF2}, s{S_T1}, {16 - sm}")
    A(f"s_lshr_b32 s{S_T1}, s{x8}, {sm}")
    A(f"s_lshl_b32 s{S_T1}, s{S_T1}, {8 + sm}")
    A(f"s_add_u32 s{S_OFF2}, s{S_OFF2}, s{S_T1}")
    A(f"s_lshr_b32 s{S_QB}, s{slot}, 2")
    A(f"s_mul_i32 s{S_CB}, s{x8}, 7")
    A(f"s_add_u32 s{S_CB}, s{S_CB}, s{S_QB}")
    A(f"s_add_u32 s{S_QB}, s{S_MB}, s{S_QB}")
    def xj(du):
        if du: A(f"s_add_u32 s{S_QB}, s{S_QB}, 1")
        A(f"s_and_b32 s{S_XJ+du}, s{S_QB}, 3")
        A(f"s_and_b32 s{S_T1}, s{S_QB}, 2")
        A(f"s_add_u32 s{S_XJ+du}, s{S_XJ+du}, s{S_T1}")
        A(f"s_lshl_b32 s{S_XJ+du}, s{S_XJ+du}, 10")
    xj(0)
    c, g = T + 2, T + 3
    A(f"v_and_b32 v{c}, 15, v0")
    A(f"v_lshrrev_b32 v{g}, 4, v0")
    A(f"v_mul_u32_u24 v{V_QO}, {4*14336}, v{g}")
    A(f"v_lshl_add_u32 v{V_QO}, v{c}, 4, v{V_QO}")
    A(f"s_mul_i32 s{S_KQ}, s{S_W4}, {256*14336}")
    A(f"s_lshl_b32 s{S_T1}, s{S_CB}, 8")
    A(f"s_add_u32 s{S_KQ}, s{S_KQ}, s{S_T1}")
    A(f"v_add_u32 v{V_QO}, s{S_KQ}, v{V_QO}")
    A(f"v_lshlrev_b32 v{c}, 3, v{c}")
    A("s_waitcnt lgkmcnt(0)")
    if Cfg.touch:
        A(f"s_cmp_ge_u32 s{S_T0}, {nx}")
        A(f"s_cbranch_scc1 tchU{SFX[0]}")
        srd(A, S_X, 8, 9, 256 * 1024 * 2)
        A(f"buffer_load_dword v{V_CHK+2}, v{T+1}, {S4(S_X)}, s{S_OFF} offen")
        A(f"s_branch tchE{SFX[0]}")
        A.label("tchU" + SFX[0])
        A(f"s_cmp_ge_u32 s{S_T0}, 96")
        A(f"s_cbranch_scc1 tchT{SFX[0]}")
        srd(A, S_U, 16, 17, 1024 * 1024 * 2)
        A(f"buffer_load_dword v{V_CHK+2}, v{T}, {S4(S_U)}, s{S_OFF2} offen")
        if sm == 2:
            A(f"s_add_u32 s{S_OFF2}, s{S_OFF2}, {80 << 14}")
            A(f"buffer_load_dword v{V_CHK+2}, v{T}, {S4(S_U)}, s{S_OFF2} offen")
        A(f"s_branch tchE{SFX[0]}")
        A.label("tchT" + SFX[0])
    A(f"s_lshl2_add_u32 s{S_T1}, s2, s{S_W4}")
    A(f"s_cmp_lg_u32 s{S_T1}, {192*4}")
    A(f"s_cbranch_scc1 tchE{SFX[0]}")
    srd(A, S_D, 22, 23, 256)
    A(f"v_mov_b32 v{V_P}, s{S_TOK}")
    A(f"v_mov_b32 v{V_P+1}, s{S_TOK+1}")
    A("s_mov_b64 exec, 1")
    A(f"buffer_store_dwordx2 v[{V_P}:{V_P+1}], off, {S4(S_D)}, 0 sc1")
    A("s_mov_b64 exec, -1")
    A.label("tchE" + SFX[0])
    srd(A, S_S, 12, 13, 3584 * 2)
    srd(A, S_Z, 14, 15, 3584 * 2)
    srd(A, S_Q, 10, 11, 1024 * 3584 * 4)
    A(f"s_lshl_b32 s{S_T0}, s{S_CB}, 7")
    P.vm(f"buffer_load_dwordx2 {v(WQ+96,2)}, v{c}, {S4(S_S)}, s{S_T0} offen")
    P.vm(f"buffer_load_dwordx2 {v(WQ+100,2)}, v{c}, {S4(S_Z)}, s{S_T0} offen", "sz")
    Q = P.Q
    Q += q_qw(P, 0)
    P.pump(6)
    srd(A, S_D, 22, 23, 256)
    srd(A, S_W, 24, 25, 32 << 20)
    srd(A, S_V, 18, 19, 3584 * 3584 * 2)
    srd(A, S_O, 20, 21, 256 * 3584 * 2)
    if Cfg.tlb:
        A(f"v_lshlrev_b32 v{T}, {Cfg.tlb}, v0")
        A(f"s_mov_b64 exec, {(1 << min(64, (26 << 21) >> Cfg.tlb >> 1)) - 1 if Cfg.tlb > 19 else -1}")
        P.vm(f"buffer_load_dword v{V_CHK+2}, v{T}, {S4(S_V)}, 0 offen")
        P.vm(f"buffer_load_dword v{V_CHK+2}, v{T}, {S4(S_W)}, 0 offen")
        A(f"v_mul_u32_u24 v{T}, {7 << 16}, v0")
        A("s_mov_b64 exec, 15")
        P.vm(f"buffer_load_dword v{V_CHK+2}, v{T}, {S4(S_O)}, 0 offen")
        A("s_mov_b64 exec, -1")
    stamp_init2(A)
    A("s_setreg_imm32_b32 hwreg(HW_REG_MODE, 4, 2), 3")
    for du in range(1, 4): xj(du)
    A(f"s_lshr_b32 s{S_T0}, s{S_W4}, 1")
    A(f"s_lshl1_add_u32 s{S_T0}, s{S_CB}, s{S_T0}")
    A(f"s_and_b32 s{S_T1}, s{S_W4}, 1")
    A(f"s_lshl2_add_u32 s{S_T0}, s{S_T0}, s{S_T1}")
    A(f"s_lshl_b32 s{S_T0}, s{S_T0}, 13")
    A(f"s_add_u32 s{S_PKB}, s{S_T0}, {PK_OFF}")
    A(f"s_lshr_b32 s{S_KQ}, s{x8}, 1")
    A(f"s_and_b32 s{S_T0}, s{x8}, 1")
    A(f"s_mul_i32 s{S_T0}, s{S_T0}, 28")
    A(f"s_add_u32 s{S_G3}, s{S_T0}, s{slot}")
    A(f"s_xor_b32 s{S_ETA}, s{slot}, s{S_W4}")
    A(f"s_and_b32 s{S_ETA}, s{S_ETA}, 1")
    A(f"s_lshl_b32 s{S_ETA}, s{S_ETA}, 7")
    A(f"s_lshl2_add_u32 s{S_T0}, s{S_KQ}, s{S_W4}")
    A(f"s_mul_i32 s{S_T0}, s{S_T0}, 7")
    A(f"s_lshr_b32 s{S_T1}, s{slot}, 2")
    if Cfg.vrow:
        A(f"s_lshr_b32 s{S_HS}, s{S_ETA}, 5")
        A(f"s_add_u32 s{S_T1}, s{S_T1}, s{S_HS}")
        A(f"s_sub_u32 s{S_HS}, s{S_T1}, 7")
        A(f"s_cselect_b32 s{S_T1}, s{S_T1}, s{S_HS}")
    for s_ in range(7):
        if s_:
            A(f"s_add_u32 s{S_T1}, s{S_T1}, 1")
            A(f"s_cmp_ge_u32 s{S_T1}, 7")
            A(f"s_cselect_b32 s{S_T1}, 0, s{S_T1}")
        A(f"s_add_u32 s{S_HS+s_}, s{S_T0}, s{S_T1}")
        A(f"s_lshl_b32 s{S_HS+s_}, s{S_HS+s_}, 10")
    for t in range(4):
        A(f"s_xor_b32 s{S_T0}, s{S_W4}, {t}")
        A(f"s_lshl2_add_u32 s{S_T0}, s{S_MB}, s{S_T0}")
        A(f"s_lshl2_add_u32 s{S_T0}, s{S_T0}, s{S_W4}")
        A(f"s_lshl_b32 s{S_XB4+t}, s{S_T0}, 13")
    dma_chunk(A, T, T+1, T+2)
    A(f"v_and_b32 v{T}, 3, v{T}")
    A(f"v_lshrrev_b32 v{T+2}, 5, v0")
    A(f"v_lshl_add_u32 v{T}, v{T+2}, 4, v{T}")
    A(f"v_mul_u32_u24 v{T}, 7168, v{T}")
    A(f"v_add_u32 v{T}, v{T}, v{T+1}")
    A(f"s_lshr_b32 s{S_T0}, s{S_G3}, 1")
    A(f"s_lshl_b32 s{S_T0}, s{S_T0}, 8")
    A(f"v_add_u32 v{V_VD}, s{S_T0}, v{T}")
    for q in range(1, 4): A(f"v_add_u32 v{V_VD+q}, {(32*(q&1)+4*(q>>1))*7168 - q*1024}, v{V_VD}")
    tr_addrs(A, T, True)
    A(f"v_lshlrev_b32 v{V_L8}, 3, v0")
    for q in range(4): A(f"v_accvgpr_write_b32 a{PZ+q}, -1")
    P.flags.add("vset")
    rp, rc = q_rpoll(P, "x")
    hp, hc = q_rpoll(P, "h")
    qn = 1; pn = 0
    SA = SB = None
    for ch in Cfg.seq1:
        if ch == "(": SA = []; SB = []; continue
        if ch == ")":
            na, nb_ = len(SA), len(SB); ia = ib = 0
            while ia < na or ib < nb_:
                if ib >= nb_ or (ia < na and ia * nb_ <= ib * na): Q.append(SA[ia]); ia += 1
                else: Q.append(SB[ib]); ib += 1
            SA = SB = None; continue
        D = Q if SA is None else SB if ch in "Vf" else SA
        if ch == "q": D += q_qw(P, qn); qn += 1
        elif ch == "t": D += q_tok(P)
        elif ch == "h": D += q_poison(P)
        elif ch == "T": D += q_tokchk(P, True)
        elif ch == "F": D += q_rflag(P)
        elif ch == "r": D += hp
        elif ch == "c": D += hc
        elif ch == "R": D += rp
        elif ch == "C": D += rc
        elif ch == "V": D += vseq(P, 1, Cfg.vml)
        elif ch == "W": D += vseq(P, 1, NRV - 1)
        elif ch == "X": D += q_xr1(P)
        elif ch == "f": D += vflush(P)
        elif ch in "12": D += q_xr(P, int(ch) - 1)
        elif ch == "H": D.append(dict(kind="act", emit=lambda: None, pre=["hst"]))
        elif ch == "G": D += q_hgate2(P) if Cfg.g3v == 2 else q_hgate(P)
        else: assert 0, ch
    assert qn == 8
    if Cfg.g3v == 2: Q += q_g3rest(P)
    else:
      for n in range(Cfg.hspec, 28):
        if n == Cfg.hspec + Cfg.vpos: Q += vseq(P, 14, NRV - 1)
        Q += q_h(P, n)
    P.VM = {m: q_vmove(P, m)[0] for m in range(P.vmn, 14)}
    lut_build(P)
    for p in range(8):
        dequant(P, p)
        if p == 3: P.stamp(15)
    P.stamp(3)
    g2(P)
    (g3b if Cfg.g3v == 2 else g3)(P)

def build():
    COLD.clear(); WARM.clear()
    A = Asm()
    A.raw(f".globl {NAME}\n.p2align 8\n.type {NAME},@function\n{NAME}:")
    prologue(A)
    B = Asm(); B.uid = 1000
    prog_S(B)
    prog_C(A)
    A.label("kfin")
    stamp_flush(A)
    A("s_endpgm")
    A.raw(B.text())
    if Cfg.seq2:
        B2 = Asm(); B2.uid = 2000
        SFX[0] = "b"; Cfg.seq1 = Cfg.seq2
        if Cfg.vlag2 >= 0: Cfg.vlag = Cfg.vlag2
        prog_C(B2)
        B2("s_branch kfin")
        A.raw(B2.text())
    for c in WARM: A.raw(c)
    A.label("kend")
    A("s_endpgm")
    for c in COLD: A.raw(c)
    out = HEADER + "; @launch grid=(256,1,1) block=(256,1,1) lds=163840\n"
    out += '.amdgcn_target "amdgcn-amd-amdhsa--gfx950"\n.text\n'
    out += A.text()
    out += '.section .rodata,"a"\n.p2align 6\n' + kernel_desc(NAME)
    return out

if __name__ == "__main__":
    for kv in sys.argv[2:]:
        k, val = kv.split("=")
        setattr(Cfg, k, json.loads(val) if val[:1] in "0123456789[-" and val else val.replace("+", " "))
    open(sys.argv[1], "w").write(build())
```

```python
import sys, json
from collections import deque
from asmlib import *
NAME = "standalone__weight_only_int_quip__sampling_kernel"

S_X, S_Q, S_S, S_Z, S_U, S_V, S_O, S_W, S_D, S_ST = 28, 32, 36, 40, 44, 48, 52, 56, 60, 64
S_W4, S_MB, S_QB, S_CB, S_TOK = 68, 69, 70, 71, 72
S_HS = 74
S_RING, S_T0, S_T1, S_T2, S_T3 = 81, 82, 83, 84, 85
S_OFF, S_OFF2 = 26, 27
S_KQ, S_G3, S_ETA, S_PS0, S_PS1 = 3, 4, 5, 6, 7
S_STB = 86
XR_OFF, H_OFF = 0, 1 << 20
PK_OFF = 20 << 20
S_PAT, S_PKB, S_MSK = 44, 0, 1
XF_OFF, HF_OFF, PF_OFF, PX_OFF = 3 << 20, (3 << 20) + 4096, (3 << 20) + 16384, 4 << 20
V_L8, V_L16, V_P = 0, 1, 2
V_VD, V_TR, V_QO, V_CHK = 4, 8, 12, 13
LUT, RAW, WQ = 16, 32, 128
V_AO, V_RA = 16, 24
WREG = 40960
BUF = 24576
SPIN = 30000

class Cfg:
    stamps = False
    D = 8
    D3 = 28
    DS = 12
    qord = ((0, 0), (0, 1), (1, 0), (2, 0), (3, 0), (1, 1), (2, 1), (3, 1))
    vlag = 3
    seq1 = "htqTVFVVqqqRVqqqVCXfrWWWWHVVVVcG"
    seq2 = ""
    vlag2 = -1
    cbit = 0
    sl = 3
    spz = 5
    sbud = 2
    emu = 0
    pspin = 12
    spipe = 1
    smap = 1
    sslack = 6
    DS2 = 12
    sdw = 0
    D2 = 20
    vpos = 0
    tlb = 0
    ff = 0
    vrow = 0
    xpz = "S"
    pzw = 4
    schk = 14
    xspec = 2
    hspec = 4
    side = 1
    rx01 = 5
    hld = "sc1"
    ost = "sc1"
    vm = ""
    vh = ""
    qm = "nt"
    qh = ""
    skip = ""
    touch = 1
    stok = 10
    vml = 3
    dwsp = [1, 1, 0]
    bud = [2, 2, 4]
    barw = 3
    fine = -1
    nock = 0
    g1pre = 7
    spf = 0
    g3v = 2
    tm0 = 1
    vp = 4
    vps = [4, 4, 2]
    burst = 4
    ckg = 3
    cka = 2
    b3 = [2, 2, 2, 3]
    dw2 = [1, 2, 2, 2]
    pka = 1
    rx1b = 96
    rx2b = 102
    rxB = 0
    gmid = 1
    vord = ""
    to0 = [2, 3, 1, 0]
    to1 = [2, 3, 1, 0]
    xpl = 0
    hpl = 0
    g2v = 2
    xsp = 8
    xburst = 12
    ckg2 = 4
    cka2 = 6
    vp2 = 3
    dwp2 = 3
    spl = [[0,4],[0,5],[0,6]]
    spd = 8
    dw64 = 0
    csl = 0
    tst = 0
    hsp = 7
    ck0 = [2, 2, 3]
    ck1 = [4, 3]
    dwp = 4
    rx0b = 60

SFX = [""]
def sreg(k): return S_STB + 2*k if k < 8 else 8 + 2*(k - 8)
def S4(d): return f"s[{d}:{d+3}]"
class Prog:
    def __init__(self, A):
        self.A = A
        self.nvm = 0; self.done = 0; self.idx = {}; self.lds = []
        self.nds = 0; self.ddone = 0; self.didx = {}
        self.flags = set(); self.Q = deque(); self.D = Cfg.D; self.g3 = False; self.isS = False
    def vm(self, text, tag=None):
        sk = False
        if "V" in Cfg.skip and S4(S_V) in text: sk = True
        if "H" in Cfg.skip and S4(S_W) in text and "load_dwordx4" in text: sk = True
        if "Q" in Cfg.skip and S4(S_Q) in text: sk = True
        if "P" in Cfg.skip and isinstance(tag, tuple) and tag[0] == "pst": sk = True
        if "h" in Cfg.skip and self.g3 and S4(S_W) in text and "load_dword" in text: sk = True
        if sk:
            if tag is not None: self.idx[tag] = self.nvm - 1
            return
        self.A(text)
        if tag is not None: self.idx[tag] = self.nvm
        if "_load_" in text: self.lds.append(self.nvm)
        self.nvm += 1
    def wait_idx(self, i):
        if i < self.done: return
        n = min(self.nvm - 1 - i, 63)
        self.A(f"s_waitcnt vmcnt({n})")
        self.done = self.nvm - n
    def ds(self, text, tag=None):
        if "L" in Cfg.skip and self.g3 and isinstance(tag, tuple) and tag[0] in ("dump", "r3")[:2 - ("l" in Cfg.skip)] and tag[1] < 4:
            self.didx[tag] = self.nds - 1
            return
        self.A(text)
        if tag is not None: self.didx[tag] = self.nds
        self.nds += 1
    def dwait_idx(self, i):
        if i < self.ddone: return
        n = min(self.nds - 1 - i, 15)
        self.A(f"s_waitcnt lgkmcnt({n})")
        self.ddone = self.nds - n
    def dall(self): self.dwait_idx(self.nds - 1)
    def wneed(self, it):
        if it["kind"] == "gate": return self.nvm
        if it["kind"] == "ld": return max(self.lds[-self.D] if len(self.lds) >= self.D else -1, self.nvm - 60)
        return self.idx[it["waits"]] if "waits" in it else -1
    def step(self, nb=False):
        if not self.Q: return None
        it = self.Q[0]
        if any(p not in self.flags for p in it.get("pre", ())): return None
        if nb and self.wneed(it) >= self.done: return None
        self.Q.popleft()
        if it["kind"] == "ld" and self.wneed(it) >= 0: self.wait_idx(self.wneed(it))
        it["emit"]()
        return it["kind"]
    def pump(self, n=1, nb=False):
        while n > 0:
            if self.step(nb) is None: return
            n -= 1
    def issue(self, tag, tab=None):
        tab = self.idx if tab is None else tab
        while tag not in tab:
            k = self.step()
            assert k is not None, f"deadlock waiting {tag}; head={self.Q[0] if self.Q else None} flags={sorted(map(str,self.flags))}"
    def need(self, tag, fill=True):
        self.issue(tag)
        while fill and self.idx[tag] >= self.done and self.Q:
            if self.wneed(self.Q[0]) > self.idx[tag]: break
            if self.step() is None: break
        self.wait_idx(self.idx[tag])
    def dneed(self, tag):
        self.issue(tag, self.didx); self.dwait_idx(self.didx[tag])
    def until(self, flag):
        while flag not in self.flags:
            k = self.step()
            assert k is not None, f"deadlock until {flag}; head={self.Q[0] if self.Q else None}"
    def stamp(self, k, fine=False):
        if Cfg.fine >= 0 and k >= 8 and not fine and not self.isS: return
        if Cfg.ff and 9 <= k <= 13 and self.g3: return
        if Cfg.stamps: self.A(f"s_memrealtime s[{sreg(k)}:{sreg(k)+1}]")

def srd(A, d, lo, hi, nbytes, add=0):
    if add:
        A(f"s_add_u32 s{d}, s{lo}, {add}")
        A(f"s_addc_u32 s{d+1}, s{hi}, 0")
    else:
        A(f"s_mov_b64 s[{d}:{d+1}], s[{lo}:{hi}]")
    A(f"s_mov_b32 s{d+2}, {nbytes}")
    A(f"s_mov_b32 s{d+3}, 0x20000")
def pk(A, d, lo, hi): A(f"v_cvt_pk_bf16_f32 v{d}, v{lo}, v{hi}")
def add2(A, d, x, y, n):
    for e in range(0, n, 2): A(f"v_pk_add_f32 {v(d+e,2)}, {v(x+e,2)}, {v(y+e,2)}")
def mfma(A, d, a_, b_, first): A(f"v_mfma_f32_16x16x32_bf16 {d}, {a_}, {b_}, {'0' if first else d}")

def stamp_flush(A, n=16):
    if not Cfg.stamps: return
    A("s_waitcnt vmcnt(0)")
    A(f"s_memrealtime s[{S_STB+14}:{S_STB+15}]")
    A("s_waitcnt lgkmcnt(0)")
    srd(A, S_ST, 24, 25, 1 << 20, 128 << 20)
    A(f"s_lshl_b32 s{S_T0}, s2, 2")
    A(f"s_add_u32 s{S_T0}, s{S_T0}, s{S_W4}")
    A(f"s_lshl_b32 s{S_T0}, s{S_T0}, 8")
    A("v_mov_b32 v4, 0")
    A("s_mov_b64 exec, 1")
    for k in range(n):
        A(f"v_mov_b32 v6, s{sreg(k)}")
        A(f"v_mov_b32 v7, s{sreg(k)+1}")
        A(f"buffer_store_dwordx2 v[6:7], v4, {S4(S_ST)}, s{S_T0} offen offset:{k*8}")
        A("s_nop 1")

def stamp_init2(A):
    if Cfg.stamps:
        A(f"s_memrealtime s[{S_STB+2}:{S_STB+3}]")
        for k in range(8, 16): A(f"s_mov_b64 s[{sreg(k)}:{sreg(k)+1}], 0")

def dma_chunk(A, row, ch, t):
    A(f"v_lshrrev_b32 v{row}, 3, v0")
    A(f"v_and_b32 v{ch}, 6, v{row}")
    A(f"v_and_b32 v{t}, 7, v0")
    A(f"v_xor_b32 v{ch}, v{ch}, v{t}")
    A(f"v_lshlrev_b32 v{ch}, 4, v{ch}")
def tr_addrs(A, t, perm=False):
    A(f"v_lshrrev_b32 v{t}, 2, v0")
    A(f"v_and_b32 v{t+1}, 6, v{t}")
    if perm:
        A(f"v_and_b32 v{t+2}, 3, v0")
        A(f"v_xor_b32 v{t+1}, v{t+1}, v{t+2}")
        A(f"v_lshlrev_b32 v{t+1}, 4, v{t+1}")
        A(f"v_lshl_add_u32 v{V_TR}, v{t}, 7, v{t+1}")
        for i in range(1, 4): A(f"v_xor_b32 v{V_TR+i}, {64*(i>>1) + 8*(i&1)}, v{V_TR}")
        for i in range(4): A(f"v_add_u32 v{V_TR+i}, s{S_RING}, v{V_TR+i}")
        return
    A(f"v_bfe_u32 v{t+2}, v0, 1, 1")
    A(f"v_or_b32 v{t+1}, v{t+1}, v{t+2}")
    A(f"v_lshlrev_b32 v{t+1}, 4, v{t+1}")
    A(f"v_lshl_add_u32 v{t+1}, v{t}, 7, v{t+1}")
    A(f"v_and_b32 v{t+2}, 1, v0")
    A(f"v_lshl_add_u32 v{V_TR}, v{t+2}, 3, v{t+1}")
    for i in range(1, 4): A(f"v_xor_b32 v{V_TR+i}, {32*i}, v{V_TR}")
    for i in range(4): A(f"v_add_u32 v{V_TR+i}, s{S_RING}, v{V_TR+i}")

def prologue(A):
    A("s_cmp_ge_u32 s2, 256")
    A("s_cbranch_scc1 kend")
    A("s_load_dwordx16 s[8:23], s[0:1], 0")
    A("s_load_dwordx2 s[24:25], s[0:1], 64")
    if Cfg.stamps:
        A(f"s_memrealtime s[{S_STB}:{S_STB+1}]")
        for k in range(1, 8): A(f"s_mov_b64 s[{S_STB+2*k}:{S_STB+2*k+1}], 0")
    A(f"s_memrealtime s[{S_TOK}:{S_TOK+1}]")
    A(f"s_getpc_b64 s[{S_ST}:{S_ST+1}]")
    A.label("pcbase")
    A(f"s_mov_b32 s{S_ST+2}, kend-pcbase")
    A(f"s_mov_b32 s{S_ST+3}, 0x20000")
    A(f"s_lshr_b32 s{S_T3}, s2, 3")
    A(f"s_mul_i32 s{S_T0}, s{S_T3}, ((kend-pcbase+4095)/4096)*128")
    A("v_lshlrev_b32 v254, 7, v0")
    A("v_cmp_gt_u32 vcc, (kend-pcbase+4095)/4096, v0")
    A("s_and_saveexec_b64 s[6:7], vcc")
    A("s_cbranch_execz pfskip")
    A(f"buffer_load_dword v255, v254, {S4(S_ST)}, s{S_T0} offen")
    A.label("pfskip")
    A("s_mov_b64 exec, -1")
    A("v_lshrrev_b32 v1, 6, v0")
    A("v_and_b32 v0, 63, v0")
    A(f"v_readfirstlane_b32 s{S_W4}, v1")
    A(f"s_and_b32 s{S_T2}, s2, 7")
    A(f"s_and_b32 s{S_MB}, s{S_T3}, 3")
    A(f"s_mul_i32 s{S_RING}, s{S_W4}, {WREG}")
    A(f"v_lshlrev_b32 v{V_L16}, 4, v0")
    A(f"s_cmp_ge_u32 s{S_T3}, 28")
    A("s_cbranch_scc1 cls_S")
    if Cfg.seq2:
        A(f"s_bitcmp1_b32 s{S_T3}, {Cfg.cbit}")
        A("s_cbranch_scc1 cls_Cb")

def q_tok(P):
    def e(): P.vm(f"buffer_load_dwordx2 v[{V_P}:{V_P+1}], off, {S4(S_D)}, 0 sc1", "tok")
    return [dict(kind="ld", emit=e)]
def q_tokchk(P, pat=False):
    A = P.A
    def e():
        P.wait_idx(P.idx["tok"])
        l = A.newlabel("tokl"); o = A.newlabel("toko")
        A(f"s_mov_b32 s{S_T3}, {SPIN}")
        A.label(l)
        A(f"v_readfirstlane_b32 s{S_TOK}, v{V_P}")
        A(f"v_readfirstlane_b32 s{S_TOK+1}, v{V_P+1}")
        A(f"s_cmp_lg_u64 s[{S_TOK}:{S_TOK+1}], 0")
        A(f"s_cbranch_scc1 {o}")
        A(f"s_sub_u32 s{S_T3}, s{S_T3}, 1")
        A(f"s_cbranch_scc1 {o}")
        A(f"buffer_load_dwordx2 v[{V_P}:{V_P+1}], off, {S4(S_D)}, 0 sc1")
        A("s_waitcnt vmcnt(0)")
        A(f"s_branch {l}")
        A.label(o)
        if pat:
            A(f"s_mov_b32 s{S_MSK}, 0xf8f8f8f8")
            for k in range(2):
                A(f"s_and_b32 s{S_PAT+2*k}, s{S_TOK+k}, s{S_MSK}")
                A(f"s_lshl_b32 s{S_PAT+2*k+1}, s{S_TOK+k}, 3")
                A(f"s_and_b32 s{S_PAT+2*k+1}, s{S_PAT+2*k+1}, s{S_MSK}")
        P.flags.add("tok")
    return [dict(kind="act", emit=e, waits="tok")]

COLD = []
def chk_code(A, regs):
    src = []; tmp = [14, 15]; out = 13
    def red(x):
        A(f"v_max3_u32 v{out}, v{x[0]}, v{x[1]}, v{x[2]}" if len(x) == 3 else f"v_max_u32 v{out}, v{x[0]}, v{x[1]}")
    cur = []
    for k, r in regs:
        if k == "a":
            t = [q for q in (14, 15, 13) if q not in cur][0]
            A(f"v_accvgpr_read_b32 v{t}, a{r}"); r = t
        cur.append(r)
        if len(cur) == 3: red(cur); cur = [out]
    if len(cur) == 2: red(cur); cur = [out]
    A(f"v_cmp_eq_u32 vcc, -1, v{cur[0]}")
WARM = []
def check(P, regs, reload, inline=False, sd=None):
    A = P.A
    l = A.newlabel("ck")
    if Cfg.nock: return
    if inline:
        A(f"s_mov_b32 s{S_T3}, {SPIN}")
        A.label(l + "l")
        chk_code(A, regs)
        A(f"s_cbranch_vccz {l}r")
        for t in reload: A(t)
        A(f"s_sub_u32 s{S_T3}, s{S_T3}, 1")
        A("s_waitcnt vmcnt(0)")
        A(f"s_cbranch_scc0 {l}l")
        A.label(l + "r")
        return
    if sd:
        rec = Rec(); chk_code(rec, regs)
        for t in rec.l: sd.hi.append(lambda t=t: A(t))
        sd.hi.append(lambda: (A(f"s_cbranch_vccnz {l}s"), A.label(l + "r")))
    else:
        chk_code(A, regs)
        A(f"s_cbranch_vccnz {l}s")
        A.label(l + "r")
    C = Asm()
    C.label(l + "s")
    C(f"s_mov_b32 s{S_T3}, {SPIN}")
    C.label(l + "l")
    for t in reload: C(t)
    C("s_waitcnt vmcnt(0)")
    chk_code(C, regs)
    C(f"s_cbranch_vccz {l}r")
    C(f"s_sub_u32 s{S_T3}, s{S_T3}, 1")
    C(f"s_cbranch_scc0 {l}l")
    C(f"s_branch {l}r")
    WARM.append(C.text())
def q_gate(P, name, probe, spec, pre, st=None, setup=None, mid=None):
    A = P.A
    def e():
        if setup: setup()
        l = A.newlabel("gt")
        if mid:
            P.vm(probe, name + "probe")
            for pt, t, tag in spec:
                if pt: A(pt)
                P.vm(t, tag)
            n0 = P.nvm
            mid()
            assert P.nvm == n0 and P.done <= P.idx[name + "probe"]
            A(f"s_mov_b32 s{S_T3}, {SPIN}")
            A.label(l)
            P.wait_idx(P.idx[name + "probe"])
            A(f"v_cmp_eq_u32 vcc, -1, v{V_P}")
            A(f"s_cbranch_vccz {l}o")
            A(f"s_sub_u32 s{S_T3}, s{S_T3}, 1")
            A(f"s_cbranch_scc1 {l}o")
            A(probe)
            for pt, t, tag in spec:
                if pt: A(pt)
                A(t)
            A(f"s_branch {l}")
            A.label(l + "o")
            P.flags.add(name + "ok")
            if st is not None: P.stamp(st)
            return
        A(f"s_mov_b32 s{S_T3}, {SPIN}")
        A.label(l)
        P.vm(probe, name + "probe")
        for pt, t, tag in spec:
            if pt: A(pt)
            P.vm(t, tag)
        P.wait_idx(P.idx[name + "probe"])
        A(f"v_cmp_eq_u32 vcc, -1, v{V_P}")
        A(f"s_cbranch_vccz {l}o")
        A(f"s_sub_u32 s{S_T3}, s{S_T3}, 1")
        A(f"s_cbranch_scc0 {l}")
        A.label(l + "o")
        P.flags.add(name + "ok")
        if st is not None: P.stamp(st)
    return dict(kind="gate", emit=e, pre=list(pre))
class Side:
    def __init__(self, P): self.q = deque(); self.hi = deque(); self.skip = 0; self.P = P
    def add(self, fn, cost=1): self.q.append((cost, fn))
    def wait(self, n): self.q.append((-n, None))
    def addf(self, d, x, y):
        if "A" in Cfg.skip and self.P.g3: return
        self.add(lambda: self.P.A(f"v_add_f32 v{d}, v{x}, v{y}"))
    def gap(self, budget=2):
        b0 = budget
        while budget > b0 - 2 and self.hi:
            self.hi.popleft()(); budget -= 1
        if self.skip: self.skip -= 1
        else:
            while self.q:
                c, f = self.q[0]
                if c < 0:
                    self.q.popleft(); self.skip = -c; break
                if c > budget: break
                self.q.popleft(); f(); budget -= c
        if budget == b0: self.P.pump(1, True)
    def drain_hi(self):
        while self.hi: self.hi.popleft()()
    def drain(self):
        self.drain_hi(); self.skip = 0
        while self.q:
            c, f = self.q.popleft()
            if c >= 0: f()
class Rec:
    def __init__(self): self.l = []
    def __call__(self, t): self.l.append(t)
def unpoison(A, r): A(f"v_min_u32 v{r}, -2, v{r}")

def flag_store(P, tv, waittag):
    A = P.A
    A(f"v_mov_b32 v{tv}, s{S_TOK}")
    A(f"v_mov_b32 v{tv+1}, s{S_TOK+1}")
    A("s_mov_b64 exec, 1")
    P.wait_idx(P.idx[waittag])
    P.vm(f"buffer_store_dwordx2 v[{tv}:{tv+1}], off, {S4(S_W)}, s{S_T0} sc1")
    A("s_mov_b64 exec, -1")

def red_addrs(A, ra):
    A(f"v_add_u32 v{ra}, s{S_RING}, v{V_L16}")
    for t in range(1, 4):
        A(f"s_xor_b32 s{S_T0}, s{S_W4}, {t}")
        A(f"s_mul_i32 s{S_T0}, s{S_T0}, {WREG}")
        A(f"v_add_u32 v{ra+t}, s{S_T0}, v{V_L16}")

def prog_S(A):
    P = Prog(A); P.D = Cfg.DS; P.isS = True
    A.label("cls_S")
    UD, XA, RA, T, ACC, RED, PZ = 4, 16, 24, 28, 128, 32, 124
    S_XB, S_UB, S_X8, S_XO, S_ROT = 3, 4, 5, 6, 7
    A(f"s_mov_b32 s{S_ROT}, s{S_MB}")
    if Cfg.smap == 0: A(f"s_mov_b32 s{S_X8}, s{S_T2}")
    elif Cfg.smap == 1:
        A(f"s_and_b32 s{S_X8}, s{S_T2}, 6")
        A(f"s_lshr_b32 s{S_T0}, s{S_ROT}, 1")
        A(f"s_add_u32 s{S_X8}, s{S_X8}, s{S_T0}")
        A(f"s_and_b32 s{S_T0}, s{S_T2}, 1")
        A(f"s_and_b32 s{S_MB}, s{S_ROT}, 1")
        A(f"s_lshl1_add_u32 s{S_MB}, s{S_T0}, s{S_MB}")
    else:
        A(f"s_and_b32 s{S_X8}, s{S_T2}, 4")
        A(f"s_add_u32 s{S_X8}, s{S_X8}, s{S_ROT}")
        A(f"s_and_b32 s{S_MB}, s{S_T2}, 3")
    dma_chunk(A, T, T+1, T+2)
    A(f"v_lshl_add_u32 v{UD}, v{T}, 11, v{T+1}")
    for q in range(1, 4): A(f"v_add_u32 v{UD+q}, {q*(8*2048-1024)}, v{UD}")
    A(f"s_lshr_b32 s{S_T0}, s{S_W4}, 1")
    A(f"s_lshl1_add_u32 s{S_T0}, s{S_MB}, s{S_T0}")
    A(f"s_lshl_b32 s{S_XB}, s{S_T0}, 16")
    A(f"s_lshl_b32 s{S_T0}, s{S_W4}, 9")
    A(f"s_add_u32 s{S_XB}, s{S_XB}, s{S_T0}")
    A(f"s_lshl_b32 s{S_UB}, s{S_W4}, 19")
    A(f"s_lshl_b32 s{S_T0}, s{S_X8}, 8")
    A(f"s_add_u32 s{S_UB}, s{S_UB}, s{S_T0}")
    for q in range(4): A(f"v_mov_b32 v{PZ+q}, -1")
    A(f"s_lshl2_add_u32 s{S_T0}, s{S_MB}, s{S_W4}")
    A(f"s_lshl_b32 s{S_T0}, s{S_T0}, 3")
    A(f"s_add_u32 s{S_T0}, s{S_T0}, s{S_X8}")
    A(f"s_lshl_b32 s{S_XO}, s{S_T0}, 12")
    A("s_waitcnt lgkmcnt(0)")
    srd(A, S_X, 8, 9, 256 * 1024 * 2)
    srd(A, S_U, 16, 17, 1024 * 1024 * 2)
    units = []
    L = Cfg.sl
    for gq in range(4 - L): units += [("u", gq, 0, 0), ("x", gq, 0, 0), ("x", gq, 1, 0), ("u", gq, 0, 1), ("u", gq, 1, 0), ("u", gq, 1, 1)]
    for gq in range(4 - L, 4): units += [("u", gq, 0, 0), ("x", gq, 0, 0), ("x", gq, 1, 0), ("u", gq, 1, 0)]
    for gq in range(4 - L, 4): units += [("u", gq, 0, 1), ("u", gq, 1, 1)]
    lastb0 = units.index(("u", 3, 1, 0))
    xun = lambda gq: units.index(("x", gq, 1, 0))
    NR = 7; DMP = {0: NR * 4096, 1: 0}
    uix = {}
    for n, u in enumerate(units):
        if u[0] == "u": uix[n] = len(uix)
    def home(n):
        k, gq, f, b = units[n]
        return 16 * (2*gq + f) if k == "x" else 128 + 16 * (uix[n] % 8)
    def dma(n):
        k, gq, f, b = units[n]
        items = []
        for q in range(4):
            def e(q=q):
                if q == 0:
                    if n >= NR: P.dwait_idx(P.didx[("rd", n - NR)])
                    A(f"s_add_u32 s{S_T0}, s{S_ROT}, {gq}")
                    A(f"s_and_b32 s{S_T0}, s{S_T0}, 3")
                    if k == "x":
                        A(f"s_lshl_b32 s{S_T0}, s{S_T0}, 7")
                        A(f"s_add_u32 s{S_OFF}, s{S_T0}, s{S_XB}")
                        if f: A(f"s_xor_b32 s{S_OFF}, s{S_OFF}, 65536")
                    else:
                        A(f"s_lshl_b32 s{S_T0}, s{S_T0}, 17")
                        A(f"s_add_u32 s{S_OFF}, s{S_T0}, s{S_UB}")
                        if f or b: A(f"s_add_u32 s{S_OFF}, s{S_OFF}, {f*65536 + b*128}")
                    A(f"s_add_u32 m0, s{S_RING}, {(n%NR)*4096}")
                    A("s_nop 0")
                P.vm(f"buffer_load_dwordx4 v{UD+q}, {S4(S_X if k=='x' else S_U)}, s{S_OFF} offen offset:{q*1024} lds", ("un", n) if q == 3 else None)
            items.append(dict(kind="ld", emit=e, pre=([("rd", n - NR)] if n >= NR else [])))
        return items
    sp, sc = q_rpoll(P, "s")
    def rflag():
        A(f"s_lshr_b32 s{S_T0}, s{S_X8}, 1")
        A(f"s_lshl2_add_u32 s{S_T0}, s{S_MB}, s{S_T0}")
        A(f"s_lshl_b32 s{S_T0}, s{S_T0}, 7")
        A(f"s_and_b32 s{S_T1}, s{S_X8}, 1")
        A(f"s_lshl2_add_u32 s{S_T1}, s{S_T1}, s{S_W4}")
        A(f"s_lshl3_add_u32 s{S_T0}, s{S_T1}, s{S_T0}")
        A(f"s_add_u32 s{S_T0}, s{S_T0}, {XF_OFF}")
        flag_store(P, T, "pz")
        P.flags.add("roks")
    if Cfg.xpz == "S":
        srd(A, S_W, 24, 25, 32 << 20)
        for q in range(4): P.vm(f"buffer_store_dword{'x4' if Cfg.pzw == 4 else ''} {v(PZ,Cfg.pzw)}, v{V_L16}, {S4(S_W)}, s{S_XO} offen offset:{q*1024} sc1", "pz")
    for n in range(24):
        P.Q += dma(n)
        if n == Cfg.stok: P.Q += q_tok(P)
        if n == Cfg.stok + 3: P.Q += q_tokchk(P)
        if Cfg.xpz == "S":
            if n == Cfg.stok + 3: P.Q.append(dict(kind="act", emit=rflag, waits="pz"))
        else:
            if n == Cfg.schk: P.Q += sp
            if n == Cfg.schk + 3: P.Q += sc
    P.pump(12)
    if Cfg.xpz != "S": srd(A, S_W, 24, 25, 32 << 20)
    P.pump(Cfg.DS - 12)
    srd(A, S_D, 22, 23, 256)
    srd(A, S_V, 18, 19, 3584 * 3584 * 2)
    stamp_init2(A)
    tr_addrs(A, T)
    c, g = T, T + 1
    A(f"v_and_b32 v{c}, 15, v0")
    A(f"v_lshrrev_b32 v{g}, 4, v0")
    A(f"v_lshlrev_b32 v{XA}, 7, v{c}")
    A(f"v_and_b32 v{T+2}, 6, v{c}")
    A(f"v_lshrrev_b32 v{T+3}, 1, v{g}")
    A(f"v_or_b32 v{T+2}, v{T+2}, v{T+3}")
    A(f"v_lshl_add_u32 v{XA}, v{T+2}, 4, v{XA}")
    A(f"v_and_b32 v{T+2}, 1, v{g}")
    A(f"v_lshl_add_u32 v{XA}, v{T+2}, 3, v{XA}")
    A(f"s_and_b32 s{S_T0}, s{S_W4}, 1")
    A(f"s_lshl_b32 s{S_T0}, s{S_T0}, 11")
    A(f"v_xor_b32 v{XA}, s{S_T0}, v{XA}")
    for k in range(1, 8): A(f"v_xor_b32 v{XA+k}, {32*(k&3) + 2048*(k>>2)}, v{XA}")
    for k in range(8): A(f"v_add_u32 v{XA+k}, s{S_RING}, v{XA+k}")
    red_addrs(A, RA)
    A(f"v_lshlrev_b32 v{V_L8}, 3, v0")
    sd = Side(P)
    def rd(n):
        k, gq, f, b = units[n]
        P.need(("un", n))
        base = home(n); lo = (n % NR) * 4096
        if k == "u":
            for i in range(4):
                for hf in range(2):
                    P.ds(f"ds_read_b64_tr_b16 {a(base+4*i+2*hf,2)}, v{V_TR+i} offset:{lo + hf*2048}", ("rd", n))
        else:
            for ff in range(2):
                for tt in range(2):
                    for h in range(2):
                        P.ds(f"ds_read_b64 {a(base+8*ff+4*tt+2*h,2)}, v{XA+4*tt+2*ff+h} offset:{lo}", ("rd", n))
        P.flags.add(("rd", n))
    def mm(n):
        k, gq, f, b = units[n]
        P.dneed(("rd", n))
        P.dneed(("rd", xun(gq)))
        for t in (1, 2, 3, 0):
            xb = 16 * (2*gq + (t >> 1)) + 8*f + 4*(t & 1)
            for i in range(4):
                d = v(ACC + 32*t + 16*b + 4*i, 4)
                mfma(A, d, a(home(n) + 4*i, 4), a(xb, 4), gq == 0 and f == 0)
                if n == 23 and t == 3 and i == 0: reduce(1)
                sd.gap(Cfg.sbud)
    def reduce(b):
        r = RED + 48*b
        for t in (1, 2, 3):
            for i in range(4):
                sd.add(lambda t=t, i=i: P.ds(f"ds_write_b128 v{RA}, {v(ACC+32*t+16*b+4*i,4)} offset:{DMP[b] + (t-1)*4096 + i*1024}", ("d1", b)), 2)
                if Cfg.sdw and not b: sd.wait(Cfg.sdw)
        sd.wait(3)
        sd.add(lambda: (P.dneed(("d1", b)), A("s_barrier")), 2)
        for t in (1, 2, 3):
            for i in range(4):
                sd.add(lambda t=t, i=i: P.ds(f"ds_read_b128 {v(r+16*(t-1)+4*i,4)}, v{RA+t} offset:{DMP[b] + (t-1)*4096 + i*1024}", ("r1", b, t)), 2)
        def adds(d, x, y, n):
            if b: sd.add(lambda: add2(A, d, x, y, n))
            else:
                for e in range(n): sd.addf(d+e, x+e, y+e)
        sd.add(lambda: P.dneed(("r1", b, 1)))
        adds(r, r, ACC+16*b, 16)
        sd.add(lambda: P.dneed(("r1", b, 3)))
        for f in range(2):
            adds(r+16+8*f, r+16+8*f, r+32+8*f, 8)
            adds(r+8*f, r+8*f, r+16+8*f, 8)
            for q in range(4): sd.add(lambda q=q, f=f: pk(A, r+16+8*f+q, r+8*f+2*q, r+8*f+2*q+1))
            sd.add(lambda f=f: unpoison(A, r+16+8*f))
            def st(f=f):
                P.until("roks")
                while P.Q: assert P.step() is not None
                P.vm(f"buffer_store_dwordx4 {v(r+16+8*f,4)}, v{V_L16}, {S4(S_W)}, s{S_XO} offen offset:{(2*b+f)*1024} sc1", "xst")
                if f: P.stamp(3 + b)
            sd.add(st, 2)
    def rd_ops(n):
        k, gq, f, b = units[n]
        base = home(n); lo = (n % NR) * 4096
        if k == "u": L = [f"ds_read_b64_tr_b16 {a(base+4*i+2*hf,2)}, v{V_TR+i} offset:{lo + hf*2048}" for i in range(4) for hf in range(2)]
        else: L = [f"ds_read_b64 {a(base+8*ff+4*tt+2*h,2)}, v{XA+4*tt+2*ff+h} offset:{lo}" for ff in range(2) for tt in range(2) for h in range(2)]
        def op(j):
            if j == 0:
                P.need(("un", n), False)
                if n in (0, 7, 15, 23): P.stamp(8 + (0, 7, 15, 23).index(n))
            P.ds(L[j], ("rd", n))
            if j == 7: P.flags.add(("rd", n))
        return [lambda j=j: op(j) for j in range(8)]
    if Cfg.spipe:
        UL = [n for n in range(24) if units[n][0] == "u"]
        last = lambda n: max(n, xun(units[n][1]))
        hi = deque(); nxt = 0
        def sgap(bud, rem):
            go = 2 * rem <= len(hi) + Cfg.sslack or len(hi) % 8
            if hi and go: hi.popleft()(); bud -= 1
            if P.step(True) is not None: bud -= 1
            if hi and go: hi.popleft()(); bud -= 1
            if sd.skip: sd.skip -= 1; return
            while sd.q and bud > 0:
                c, f = sd.q[0]
                if c < 0: sd.q.popleft(); sd.skip = -c; break
                sd.q.popleft(); f(); bud -= c
        def drain():
            while hi:
                hi.popleft()(); P.step(True)
        for j, n in enumerate(UL):
            while nxt <= last(n):
                hi.extend(rd_ops(nxt)); nxt += 1
            drain()
            if j + 1 < len(UL):
                while nxt <= last(UL[j + 1]):
                    hi.extend(rd_ops(nxt)); nxt += 1
            k, gq, f, b = units[n]
            P.dneed(("rd", last(n)))
            for t in (1, 2, 3, 0):
                xb = 16 * (2*gq + (t >> 1)) + 8*f + 4*(t & 1)
                for i in range(4):
                    mfma(A, v(ACC + 32*t + 16*b + 4*i, 4), a(home(n) + 4*i, 4), a(xb, 4), gq == 0 and f == 0)
                    if n in (23, lastb0) and t == 3 and i == 0:
                        reduce(b)
                        P.D = Cfg.DS2
                    sgap(2 if n in (23, lastb0) else Cfg.sbud, 16 - 4*((t - 1) & 3) - i)
    else:
        pend = []
        for n in range(24):
            rd(n)
            if n in (0, 7, 15, 23): P.stamp(8 + (0, 7, 15, 23).index(n))
            if units[n][0] == "u": pend.append(n)
            while len(pend) > 1 and ("rd", xun(units[pend[0]][1])) in P.flags:
                m = pend.pop(0)
                mm(m)
                if m == lastb0: reduce(0)
        assert pend == [23]
        mm(23)
    P.stamp(2)
    sd.drain()
    assert not P.Q
    if Cfg.spl:
        A(f"v_bfe_u32 v4, v{V_L16}, 4, 3")
        A(f"v_bfe_u32 v5, v{V_L16}, 7, 2")
        A(f"v_lshl_add_u32 v4, v5, 4, v4")
        A(f"v_mul_u32_u24 v4, 7168, v4")
        A(f"v_lshrrev_b32 v5, 9, v{V_L16}")
        A(f"v_lshl_add_u32 v4, v5, 7, v4")
        A("s_and_b32 s3, s2, 1")
        A("s_bfe_u32 s4, s2, 0x20001")
        A(f"s_lshl2_add_u32 s4, s4, s{S_W4}")
        A("s_mul_i32 s4, s4, 7")
        A("s_lshl1_add_u32 s5, s3, 1")
        A(f"s_lshl2_add_u32 s5, s{S_ROT}, s5")
        A("s_mul_i32 s3, s3, 14")
        for n, (r, s_, *md) in enumerate(Cfg.spl):
            l = A.newlabel("sp")
            A(f"s_xor_b32 s6, s5, {r}")
            A("s_cmp_ge_u32 s6, 14")
            A(f"s_cbranch_scc1 {l}")
            A(f"s_lshr_b32 s{S_T0}, s6, 1")
            A(f"s_add_u32 s{S_T0}, s{S_T0}, {s_}")
            A(f"s_sub_u32 s{S_T1}, s{S_T0}, 7")
            A(f"s_cselect_b32 s{S_T0}, s{S_T0}, s{S_T1}")
            A(f"s_add_u32 s{S_T0}, s{S_T0}, s4")
            A(f"s_lshr_b32 s{S_T1}, s{S_T0}, 1")
            A(f"s_and_b32 s{S_T0}, s{S_T0}, 1")
            A(f"s_lshl3_add_u32 s{S_T0}, s{S_T1}, s{S_T0}")
            A(f"s_mul_i32 s{S_T0}, s{S_T0}, {8*7168}")
            A(f"s_add_u32 s6, s6, s3")
            A(f"s_lshl_b32 s6, s6, 8")
            A(f"s_add_u32 s{S_T0}, s{S_T0}, s6")
            if n >= Cfg.spd: A(f"s_waitcnt vmcnt({Cfg.spd - 1})")
            A(f"s_mov_b32 exec_lo, {0 if md and md[0] else -1}")
            A(f"buffer_load_dword v{8+n}, v4, {S4(S_V)}, s{S_T0} offen")
            A.label(l)
        A("s_mov_b64 exec, -1")
    A("s_branch kfin")

S_XJ, S_XB4 = 64, 28
V_RF, V_OUT = WQ + 116, 28
PXW = 4352
PZ = 220
def pk_loads(p):
    du, b = Cfg.qord[p]
    W = WQ + 16*p
    return [f"s_lshl2_add_u32 s{S_T0}, s{S_XJ+du}, s{S_PKB}"] + \
           [f"buffer_load_dwordx4 {v(W+8+4*k,4)}, v{V_L16}, {S4(S_W)}, s{S_T0} offen offset:{2048*b+1024*k} sc1" for k in range(2)]
def q_qw(P, p):
    A = P.A
    items = []
    du, b = Cfg.qord[p]
    if du:
        L = pk_loads(p)
        for k in range(2):
            items.append(dict(kind="ld", emit=lambda k=k: (A(L[0]), P.vm(L[1+k], ("q", p) if k else None)), pre=["lut"]))
        return items
    assert p < 2
    for j in range(8):
        def e(j=j):
            if j == 0:
                A(f"s_mul_i32 s{S_OFF}, s{S_XJ+du}, 448")
                if b: A(f"s_add_u32 s{S_OFF}, s{S_OFF}, {64*14336}")
            else:
                A(f"s_add_u32 s{S_OFF}, s{S_OFF}, {(13 if j == 4 else 1)*14336}")
            P.vm(f"buffer_load_dwordx4 {v(RAW+32*p+4*j,4)}, v{V_QO}, {S4(S_Q)}, s{S_OFF} offen {Cfg.qm}", ("q", p) if j == 7 else None)
        items.append(dict(kind="ld", emit=e))
    return items

def h_off(A, d):
    A(f"s_lshl2_add_u32 s{d}, s{S_MB}, s{S_W4}")
    A(f"s_mul_i32 s{d}, s{d}, 56")
    A(f"s_add_u32 s{d}, s{d}, s{S_CB}")
    A(f"s_lshl_b32 s{d}, s{d}, 11")
    A(f"s_add_u32 s{d}, s{d}, {H_OFF}")
def px_off(A, d, p, send, wx=0):
    if send:
        A(f"s_add_u32 s{d}, s{S_KQ}, {1+p}")
        A(f"s_and_b32 s{d}, s{d}, 3")
        A(f"s_lshl2_add_u32 s{d}, s{S_G3}, s{d}")
    else:
        A(f"s_lshl2_add_u32 s{d}, s{S_G3}, s{S_KQ}")
    A(f"s_mul_i32 s{d}, s{d}, 12")
    A(f"s_add_u32 s{d}, s{d}, s{S_W4}")
    if wx: A(f"s_xor_b32 s{d}, s{d}, {wx}")
    A(f"s_mul_i32 s{d}, s{d}, {PXW}")
    A(f"s_add_u32 s{d}, s{d}, {PX_OFF + p*4*PXW}")
def fi_idx(A, d):
    A(f"s_lshr_b32 s{d}, s{S_MB}, 1")
    A(f"s_mul_i32 s{d}, s{d}, 56")
    A(f"s_add_u32 s{d}, s{d}, s{S_CB}")
    A(f"s_and_b32 s{S_T1}, s{S_MB}, 1")
    A(f"s_lshl1_add_u32 s{d}, s{d}, s{S_T1}")
    A(f"s_lshl2_add_u32 s{d}, s{d}, s{S_W4}")
def q_poison(P):
    A = P.A
    def e():
        assert ("vmoved", 13) not in P.flags
        if Cfg.xpz == "C":
            fi_idx(A, S_T0)
            A(f"s_and_b32 s{S_T1}, s{S_T0}, 0x387")
            A(f"s_bfe_u32 s{S_T2}, s{S_T0}, 0x20003")
            A(f"s_lshl_b32 s{S_T2}, s{S_T2}, 5")
            A(f"s_or_b32 s{S_T1}, s{S_T1}, s{S_T2}")
            A(f"s_bfe_u32 s{S_T2}, s{S_T0}, 0x20005")
            A(f"s_lshl3_add_u32 s{S_T1}, s{S_T2}, s{S_T1}")
            A(f"s_lshl_b32 s{S_T1}, s{S_T1}, 10")
            A(f"s_cmp_lt_u32 s{S_T0}, 512")
            A("s_cselect_b64 exec, -1, 0")
            P.vm(f"buffer_store_dwordx4 {a(PZ,4)}, v{V_L16}, {S4(S_W)}, s{S_T1} offen sc1")
            A("s_mov_b64 exec, -1")
        h_off(A, S_T0)
        for q in range(2): P.vm(f"buffer_store_dword{'x4' if Cfg.pzw == 4 else ''} {a(PZ,Cfg.pzw)}, v{V_L16}, {S4(S_W)}, s{S_T0} offen offset:{q*1024} sc1", "pzh")
    return [dict(kind="act", emit=e, pre=["vset"])]
def q_rflag(P):
    A = P.A
    def e():
        fi_idx(A, S_T0)
        A(f"s_lshl_b32 s{S_T0}, s{S_T0}, 3")
        A(f"s_add_u32 s{S_T0}, s{S_T0}, {HF_OFF}")
        flag_store(P, 14, "pzh")
        P.flags.add("rflag")
    return [dict(kind="act", emit=e, waits="pzh", pre=["tok"])]
def q_rpoll(P, w):
    A = P.A
    d = V_P if w in "xs" else 30
    ld = f"buffer_load_dwordx2 v[{d}:{d+1}], v{V_L8}, {S4(S_W)}, s{S_QB} offen sc1"
    ex = "s_mov_b64 exec, 15" if w == "s" else "s_mov_b64 exec, 0xff" if w == "x" and Cfg.xpz == "S" else "s_mov_b32 exec_hi, 0"
    def e():
        if w == "h":
            A(f"s_lshl2_add_u32 s{S_T1}, s{S_KQ}, s{S_W4}")
            A(f"s_mul_i32 s{S_T1}, s{S_T1}, 7")
            A(f"s_lshr_b32 s{S_T1}, s{S_T1}, 1")
            A(f"s_bitcmp1_b32 s{S_G3}, 0")
            A(f"s_cselect_b32 s{S_T0}, 56, 0")
            A(f"s_add_u32 s{S_T1}, s{S_T1}, s{S_T0}")
            A(f"s_lshl_b32 s{S_T1}, s{S_T1}, 6")
            A(f"s_add_u32 s{S_QB}, s{S_T1}, {HF_OFF}")
        elif w == "s":
            A(f"s_lshr_b32 s{S_T1}, s5, 1")
            A(f"s_lshl2_add_u32 s{S_T1}, s{S_MB}, s{S_T1}")
            A(f"s_lshl2_add_u32 s{S_T1}, s{S_T1}, s{S_W4}")
            A(f"s_and_b32 s{S_T0}, s5, 1")
            A(f"s_lshl1_add_u32 s{S_T1}, s{S_T1}, s{S_T0}")
            A(f"s_lshl_b32 s{S_T1}, s{S_T1}, 5")
            A(f"s_add_u32 s{S_QB}, s{S_T1}, {HF_OFF}")
        else:
            A(f"s_lshl2_add_u32 s{S_T1}, s{S_MB}, s{S_W4}")
            A(f"s_lshl_b32 s{S_T1}, s{S_T1}, {7 if Cfg.xpz == 'S' else 8}")
            A(f"s_add_u32 s{S_QB}, s{S_T1}, {XF_OFF if Cfg.xpz == 'S' else HF_OFF}")
        A(ex)
        P.vm(ld, "rpoll" + w)
        A("s_mov_b64 exec, -1")
    def chk():
        P.wait_idx(P.idx["rpoll" + w])
        l = A.newlabel("pl"); o = A.newlabel("po")
        A(ex)
        A(f"s_mov_b32 s{S_T3}, {SPIN}")
        A.label(l)
        A(f"v_cmp_ne_u64 vcc, s[{S_TOK}:{S_TOK+1}], v[{d}:{d+1}]")
        A(f"s_cbranch_vccz {o}")
        A(f"s_sub_u32 s{S_T3}, s{S_T3}, 1")
        A(f"s_cbranch_scc1 {o}")
        A(ld)
        A("s_waitcnt vmcnt(0)")
        A(f"s_branch {l}")
        A.label(o)
        A("s_mov_b64 exec, -1")
        P.flags.add("rok" + w)
        if w == "h": P.stamp(2)
    return [dict(kind="ld", emit=e, pre=["tok"] if w in "xs" else ["rokx", ("dq", 7)])], [dict(kind="act", emit=chk, waits="rpoll" + w, pre=[] if w in "xs" else ["hst"])]

def g2order(): return [p for p in range(8) if Cfg.qord[p][1] == 0] + [p for p in range(8) if Cfg.qord[p][1] == 1]
def xr_home(g):
    if g < 4: return [("a", 224), ("a", 240), ("v", 96), ("v", 112)][g]
    if "X" in Cfg.seq1:
        s_, b = vorder()[6 + g]
        return ("a", 32*s_ + 16*b)
    return ("v", WQ + 16*g2order()[g - 4])
def xr_loads(g):
    du, b = Cfg.qord[g2order()[g]]
    k, hb = xr_home(g)
    return [(f"s_add_u32 s{S_T0}, s{S_XB4+t}, s{S_XJ+du}",
             f"buffer_load_dwordx4 {R(k,hb+4*t,4)}, v{V_L16}, {S4(S_W)}, s{S_T0} offen offset:{2048*b} {Cfg.hld}",
             ("xr", g) if t == 3 else None) for t in range(4)]
def q_xr(P, b):
    A = P.A
    def setup():
        if b: return
        A(f"v_bfe_u32 v14, v{V_L8}, 5, 2")
        A(f"v_and_b32 v15, 2, v14")
        A(f"v_add_u32 v14, v14, v15")
        A(f"v_bfe_u32 v15, v{V_L8}, 3, 2")
        A(f"v_lshl_add_u32 v14, v15, 5, v14")
        A(f"s_lshl_b32 s{S_T0}, s{S_MB}, 4")
        A(f"s_add_u32 s{S_T0}, s{S_T0}, s{S_W4}")
        A(f"s_lshl_b32 s{S_T0}, s{S_T0}, 13")
        A(f"v_lshlrev_b32 v14, 10, v14")
        A(f"v_add_u32 v{V_P+1}, s{S_T0}, v14")
    spec = []
    for g in range(4*b, 4*b + Cfg.xspec): spec += xr_loads(g)
    pre = ["rokx", ("dq", Cfg.g1pre)] if b == 0 else [("g2", 3)]
    items = [q_gate(P, f"x{b}", f"buffer_load_dword v{V_P}, v{V_P+1}, {S4(S_W)}, 0 offen offset:{2048*b} sc1", spec, pre, 4 if b else 14, setup)]
    for g in range(4*b + Cfg.xspec, 4*b + 4):
        for pt, t, tag in xr_loads(g):
            items.append(dict(kind="ld", emit=lambda pt=pt, t=t, tag=tag: (A(pt), P.vm(t, tag))))
    return items

def xprobe_setup(P):
    A = P.A
    if "xps" in P.flags: return
    P.flags.add("xps")
    A(f"v_bfe_u32 v14, v{V_L8}, 5, 3")
    A(f"v_bfe_u32 v15, v{V_L8}, 3, 2")
    A(f"v_lshl_add_u32 v14, v15, 5, v14")
    A(f"s_lshl_b32 s{S_T0}, s{S_MB}, 4")
    A(f"s_add_u32 s{S_T0}, s{S_T0}, s{S_W4}")
    A(f"s_lshl_b32 s{S_T0}, s{S_T0}, 13")
    A(f"v_lshlrev_b32 v14, 10, v14")
    if Cfg.xpl:
        A(f"s_lshr_b32 s{S_T1}, s2, 5")
        A(f"v_lshrrev_b32 v15, 8, v{V_L8}")
        if Cfg.xpl == 1:
            A(f"v_mul_u32_u24 v15, 7, v15")
            A(f"v_max_u32 v15, s{S_T1}, v15")
        else:
            A(f"v_lshl_add_u32 v15, v15, 2, s{S_T1}")
            A(f"v_and_b32 v15, 7, v15")
        A(f"v_lshl_add_u32 v14, v15, 7, v14")
    A(f"v_add_u32 v{V_XP}, s{S_T0}, v14")
V_XP = 3
def q_xtouch(P):
    def e():
        xprobe_setup(P)
        P.vm(f"buffer_load_dword v{V_P}, v{V_XP}, {S4(S_W)}, 0 offen sc1")
    return [dict(kind="ld", emit=e, pre=["rokx"])]
def q_xr1(P):
    A = P.A
    def setup():
        xprobe_setup(P)
        P.D = Cfg.D2
    spec = []
    for g in range(Cfg.xspec): spec += xr_loads(g)
    items = [q_gate(P, "x0", f"buffer_load_dword v{V_P}, v{V_XP}, {S4(S_W)}, 0 offen sc1", spec, ["rokx", "rflag", ("dq", Cfg.g1pre)], 14, setup)]
    for g in range(Cfg.xspec, 8):
        for pt, t, tag in xr_loads(g):
            items.append(dict(kind="ld", emit=lambda pt=pt, t=t, tag=tag: (A(pt), P.vm(t, tag))))
    return items

def vorder():
    out = []; L = Cfg.vlag
    if Cfg.vord: return [(int(Cfg.vord[k+1]), "ab".index(Cfg.vord[k])) for k in range(0, 28, 2)]
    if Cfg.vrow: return [(k, b) for k in range(7) for b in range(2)]
    for k in range(7 + L):
        if k < 7: out.append((k, 0))
        if k - L >= 0: out.append((k - L, 1))
    return out
NRV = 6
S_VO = [32, 33, 34, 35, 44, 45, 46]
def vo_calc(A, d, s_):
    A(f"s_lshr_b32 s{d}, s{S_HS+s_}, 11")
    A(f"s_mul_i32 s{d}, s{d}, {64*7168}")
    A(f"s_bitcmp1_b32 s{S_HS+s_}, 10")
    A(f"s_cselect_b32 s{S_T0}, {8*7168}, 0")
    A(f"s_add_u32 s{d}, s{d}, s{S_T0}")
    A(f"s_add_u32 s{d}, s{d}, s{S_ETA}")
def q_vdma(P, n):
    A = P.A
    s_, b = vorder()[n]
    items = []
    for q in range(4):
        def e(q=q):
            if q == 0:
                if n >= NRV: P.dwait_idx(P.didx[("vm", n - NRV)])
                A(f"s_add_u32 m0, s{S_RING}, {(n%NRV)*4096}")
                if "vo" in P.flags: A(f"s_xor_b32 s{S_OFF2}, s{S_VO[s_]}, {128*b}")
                else:
                    vo_calc(A, S_OFF2, s_)
                    if b: A(f"s_xor_b32 s{S_OFF2}, s{S_OFF2}, 128")
            P.vm(f"buffer_load_dwordx4 v{V_VD+q}, {S4(S_V)}, s{S_OFF2} offen offset:{q*1024} {Cfg.vh if b else Cfg.vm} lds", ("v", n) if q == 3 else None)
        items.append(dict(kind="ld", emit=e, pre=["vset"] + ([("vmoved", n - NRV)] if n >= NRV else [])))
    return items
def q_vmove(P, n):
    s_, b = vorder()[n]
    def e():
        P.wait_idx(P.idx[("v", n)])
        for i in range(4):
            for hf in range(2):
                P.ds(f"ds_read_b64_tr_b16 {a(32*s_+16*b+4*i+2*hf, 2)}, v{V_TR+i} offset:{(n%NRV)*4096 + hf*2048}", ("vm", n))
        P.flags.add(("vmoved", n))
    return [dict(kind="act", emit=e, waits=("v", n), pre=[("g2", n - 6)] if n >= 10 and "X" in Cfg.seq1 else [])]
def vseq(P, cnt, lag=3):
    items = []
    for _ in range(cnt):
        if P.vn >= 14: break
        items += q_vdma(P, P.vn); P.vn += 1
        while P.vmn < P.vn - lag:
            items += q_vmove(P, P.vmn); P.vmn += 1
    return items
def vflush(P):
    items = []
    while P.vmn < P.vn:
        items += q_vmove(P, P.vmn); P.vmn += 1
    return items

def lut_build(P):
    A = P.A
    SC, ZE, T = WQ + 96, WQ + 100, WQ + 104
    P.need("sz")
    if Cfg.ff: P.stamp(9)
    for b in (SC, ZE):
        A(f"v_and_b32 v{b+3}, 0xffff0000, v{b+1}")
        A(f"v_lshlrev_b32 v{b+2}, 16, v{b+1}")
        A(f"v_and_b32 v{b+1}, 0xffff0000, v{b}")
        A(f"v_lshlrev_b32 v{b}, 16, v{b}")
    fl = ["0", "1.0", "2.0", "0x40400000", "4.0", "0x40a00000", "0x40c00000", "0x40e00000"]
    PP = WQ + 64
    for u in range(4):
        I4 = range(4)
        for i in I4: A(f"v_sub_f32 v{T+i}, {fl[2*u]}, v{ZE+i}")
        for i in I4: A(f"v_sub_f32 v{T+4+i}, {fl[2*u+1]}, v{ZE+i}")
        for i in I4: pk(A, T+i, T+i, T+4+i)
        for i in I4: A(f"v_and_b32 v{T+4+i}, 0xffff0000, v{T+i}")
        for i in I4: A(f"v_lshlrev_b32 v{T+i}, 16, v{T+i}")
        for i in I4: A(f"v_mul_f32 v{T+4+i}, v{T+4+i}, v{SC+i}")
        for i in I4: A(f"v_mul_f32 v{T+i}, v{T+i}, v{SC+i}")
        for i in I4: pk(A, PP+4*u+i, T+i, T+4+i)
        P.pump(2, True)
    A(f"s_mov_b32 s{S_PS0}, 0x06040200")
    A(f"s_mov_b32 s{S_PS1}, 0x07050301")
    for i in range(4):
        for hh in range(2):
            A(f"v_perm_b32 v{LUT+4*i+hh}, v{PP+8*hh+4+i}, v{PP+8*hh+i}, s{S_PS0}")
            A(f"v_perm_b32 v{LUT+4*i+2+hh}, v{PP+8*hh+4+i}, v{PP+8*hh+i}, s{S_PS1}")
    A(f"s_mov_b32 s{S_PS0}, 0x05010400")
    A(f"s_mov_b32 s{S_PS1}, 0x07030602")
    P.flags.add("lut")

def dequant(P, p):
    A = P.A
    du, b = Cfg.qord[p]
    if du == 0: P.until("tok")
    if Cfg.ff and p == 0: P.stamp(10)
    P.need(("q", p))
    if Cfg.ff and p < 3: P.stamp(11 + p)
    rb = RAW + 32*p if du == 0 else RAW
    W = WQ + 16*p
    r = lambda j, i: rb + 4*j + i
    SEL = RAW + 64 + 16*(p & 1); TM = SEL + 8
    def pchk(X):
        for k in range(8): X(f"v_xor_b32 v{SEL+k}, s{S_PAT+(k&3)}, v{W+8+k}")
        X(f"v_or3_b32 v{V_CHK}, v{SEL}, v{SEL+1}, v{SEL+2}")
        X(f"v_or3_b32 v{V_CHK+1}, v{SEL+3}, v{SEL+4}, v{SEL+5}")
        X(f"v_or3_b32 v{V_CHK}, v{V_CHK}, v{SEL+6}, v{SEL+7}")
        X(f"v_or_b32 v{V_CHK}, v{V_CHK}, v{V_CHK+1}")
        X(f"v_and_b32 v{V_CHK}, s{S_MSK}, v{V_CHK}")
        X(f"v_cmp_ne_u32 vcc, 0, v{V_CHK}")
    if du == 0:
        for hh in range(2):
            for i in range(4):
                A(f"v_cvt_pk_u16_u32 v{W+4*i+2*hh}, v{r(4*hh,i)}, v{r(4*hh+2,i)}")
                A(f"v_cvt_pk_u16_u32 v{W+4*i+2*hh+1}, v{r(4*hh+1,i)}, v{r(4*hh+3,i)}")
            P.pump(1, True)
        A(f"v_or3_b32 v{V_CHK}, v{W}, v{W+1}, v{W+2}")
        A(f"v_or3_b32 v{V_CHK+1}, v{W+3}, v{W+4}, v{W+5}")
        for k in range(6, 14, 4):
            A(f"v_or3_b32 v{V_CHK}, v{V_CHK}, v{W+k}, v{W+k+1}")
            A(f"v_or3_b32 v{V_CHK+1}, v{V_CHK+1}, v{W+k+2}, v{W+k+3}")
        A(f"v_or3_b32 v{V_CHK}, v{V_CHK}, v{W+14}, v{W+15}")
        A(f"v_or_b32 v{V_CHK}, v{V_CHK}, v{V_CHK+1}")
        A(f"v_and_b32 v{V_CHK}, 0xfff8fff8, v{V_CHK}")
        A(f"v_cmp_ne_u32 vcc, 0, v{V_CHK}")
        for k in range(8): A(f"v_lshl_or_b32 v{SEL+k}, v{W+2*k+1}, 8, v{W+2*k}")
        A(f"s_lshl2_add_u32 s{S_T0}, s{S_XJ}, s{S_PKB}")
        A(f"s_cbranch_vccnz dqg{p}{SFX[0]}")
        for k in range(8): A(f"v_or_b32 v{rb+8+k}, s{S_PAT+(k&3)}, v{SEL+k}")
        for k in range(2): P.vm(f"buffer_store_dwordx4 {v(rb+8+4*k,4)}, v{V_L16}, {S4(S_W)}, s{S_T0} offen offset:{2048*b+1024*k} sc1")
    else:
        pchk(A)
        if not Cfg.nock: A(f"s_cbranch_vccnz dqs{p}{SFX[0]}")
        A.label(f"dqf{p}{SFX[0]}")
        C = Asm()
        C.label(f"dqs{p}{SFX[0]}")
        C(f"s_mov_b32 s{S_T3}, {Cfg.pspin}")
        C.label(f"dql{p}{SFX[0]}")
        for t in pk_loads(p): C(t)
        C("s_waitcnt vmcnt(0)")
        pchk(C)
        C(f"s_cbranch_vccz dqf{p}{SFX[0]}")
        C(f"s_sub_u32 s{S_T3}, s{S_T3}, 1")
        C(f"s_cbranch_scc0 dql{p}{SFX[0]}")
        C(f"s_branch dqg{p}{SFX[0]}")
        WARM.append(C.text())
    for hh in range(2):
        for i in range(4):
            d = W + 4*i + 2*hh
            A(f"v_perm_b32 v{d+1}, v{LUT+4*i+1}, v{LUT+4*i}, v{SEL+2*i+hh}")
            A(f"v_perm_b32 v{TM+4*hh+i}, v{LUT+4*i+3}, v{LUT+4*i+2}, v{SEL+2*i+hh}")
        for i in range(4):
            d = W + 4*i + 2*hh
            A(f"v_perm_b32 v{d}, v{TM+4*hh+i}, v{d+1}, s{S_PS0}")
            A(f"v_perm_b32 v{d+1}, v{TM+4*hh+i}, v{d+1}, s{S_PS1}")
    A.label(f"dqr{p}{SFX[0]}")
    P.flags.add(("dq", p))
    P.pump(2, True)
    C = Asm()
    C.label(f"dqg{p}{SFX[0]}")
    SC = W; ZE = W + 4
    if du:
        for j in range(8):
            if j == 0:
                C(f"s_mul_i32 s{S_T0}, s{S_XJ+du}, 448")
                if b: C(f"s_add_u32 s{S_T0}, s{S_T0}, {64*14336}")
            else: C(f"s_add_u32 s{S_T0}, s{S_T0}, {(13 if j == 4 else 1)*14336}")
            C(f"buffer_load_dwordx4 {v(rb+4*j,4)}, v{V_QO}, {S4(S_Q)}, s{S_T0} offen")
    C(f"v_bfe_u32 v{V_CHK}, v{V_L8}, 3, 4")
    C(f"v_lshlrev_b32 v{V_CHK}, 3, v{V_CHK}")
    C(f"s_lshl_b32 s{S_T0}, s{S_CB}, 7")
    C(f"buffer_load_dwordx2 v[{SC}:{SC+1}], v{V_CHK}, {S4(S_S)}, s{S_T0} offen")
    C(f"buffer_load_dwordx2 v[{ZE}:{ZE+1}], v{V_CHK}, {S4(S_Z)}, s{S_T0} offen")
    C("s_waitcnt vmcnt(0)")
    for b in (SC, ZE):
        C(f"v_and_b32 v{b+3}, 0xffff0000, v{b+1}")
        C(f"v_lshlrev_b32 v{b+2}, 16, v{b+1}")
        C(f"v_and_b32 v{b+1}, 0xffff0000, v{b}")
        C(f"v_lshlrev_b32 v{b}, 16, v{b}")
    for q in range(4):
        r0 = rb + 8*q; r1 = r0 + 4
        for i in range(4):
            C(f"v_cvt_f32_i32 v{r0+i}, v{r0+i}")
            C(f"v_cvt_f32_i32 v{r1+i}, v{r1+i}")
            pk(C, r0+i, r0+i, r1+i)
            C(f"v_and_b32 v{r1+i}, 0xffff0000, v{r0+i}")
            C(f"v_lshlrev_b32 v{r0+i}, 16, v{r0+i}")
            C(f"v_sub_f32 v{r1+i}, v{r1+i}, v{ZE+i}")
            C(f"v_sub_f32 v{r0+i}, v{r0+i}, v{ZE+i}")
            pk(C, r0+i, r0+i, r1+i)
            C(f"v_and_b32 v{r1+i}, 0xffff0000, v{r0+i}")
            C(f"v_lshlrev_b32 v{r0+i}, 16, v{r0+i}")
            C(f"v_mul_f32 v{r1+i}, v{r1+i}, v{SC+i}")
            C(f"v_mul_f32 v{r0+i}, v{r0+i}, v{SC+i}")
            pk(C, r0+i, r0+i, r1+i)
    for q in range(4):
        for i in range(4): C(f"v_mov_b32 v{W+4*i+q}, v{rb+8*q+i}")
    C(f"s_branch dqr{p}{SFX[0]}")
    COLD.append(C.text())

def g2setup(P):
    A = P.A
    red_addrs(A, V_RA)
    A(f"s_and_b32 s{S_T1}, s{S_G3}, 1")
    A(f"s_lshl_b32 s{S_T1}, s{S_T1}, 3")
    A(f"s_lshr_b32 s{S_T0}, s{S_W4}, 1")
    A(f"s_add_u32 s{S_T1}, s{S_T1}, s{S_T0}")
    for p in range(4):
        A(f"s_add_u32 s{S_T0}, s{S_KQ}, {1+p}")
        A(f"s_and_b32 s{S_T0}, s{S_T0}, 3")
        A(f"s_lshl1_add_u32 s{S_T0}, s{S_T0}, s{S_T1}")
        for a_ in range(2):
            if a_: A(f"s_xor_b32 s{S_T0}, s{S_T0}, 1")
            A(f"s_mul_i32 s{S_T2}, s{S_T0}, {112*1024}")
            A(f"s_add_u32 s{S_T2}, s{S_T2}, {H_OFF}")
            A(f"v_add_u32 v{V_AO+2*p+a_}, s{S_T2}, v{V_L16}")
    A(f"v_bfe_u32 v14, v{V_L8}, 3, 4")
    A(f"v_lshrrev_b32 v15, 7, v{V_L8}")
    A(f"v_mul_u32_u24 v{V_OUT}, 7168, v14")
    A(f"v_lshl_add_u32 v{V_OUT}, v15, 4, v{V_OUT}")
    A(f"v_bfe_u32 v14, v{V_L8}, 3, 3")
    A(f"v_lshrrev_b32 v15, 6, v{V_L8}")
    A(f"v_min_u32 v15, 6, v15")
    A(f"v_mul_u32_u24 v14, 112, v14")
    A(f"v_add_u32 v14, v14, v15")
    A(f"s_lshl2_add_u32 s{S_T0}, s{S_KQ}, s{S_W4}")
    A(f"s_mul_i32 s{S_T0}, s{S_T0}, 7")
    A(f"s_bitcmp1_b32 s{S_G3}, 0")
    A(f"s_cselect_b32 s{S_T1}, {8*112}, 0")
    A(f"s_add_u32 s{S_T0}, s{S_T0}, s{S_T1}")
    A(f"s_add_u32 s{S_T0}, s{S_T0}, {H_OFF >> 10}")
    A(f"v_add_u32 v14, s{S_T0}, v14")
    A(f"v_lshlrev_b32 v{V_OUT+1}, 10, v14")
    if Cfg.hpl:
        A(f"s_bfe_u32 s{S_T0}, s2, 0x30004")
        A(f"s_lshl_b32 s{S_T0}, s{S_T0}, 7")
        A(f"v_add_u32 v{V_OUT+1}, s{S_T0}, v{V_OUT+1}")
def g2(P):
    A = P.A
    ACC = 32
    g2setup(P)
    od = g2order()
    def ck(g):
        P.need(("xr", g))
        k, hb = xr_home(g)
        rl = []
        for pt, t, tag in xr_loads(g): rl += [pt, t]
        check(P, [(k, hb + 4*t) for t in range(4)], rl)
    for g in range(8):
        p = od[g]
        X1 = "X" in Cfg.seq1
        if g == 0 or (g == 4 and not X1): ck(g)
        k, b = xr_home(g)
        for t in (1, 2, 3, 0):
            for i in range(4):
                mfma(A, v(ACC+16*t+4*i, 4), v(WQ+16*p+4*i, 4), R(k, b+4*t, 4), g == 0)
                if i % 2 == 1: P.pump(1, True)
                if g == 7 and t in (3, 0):
                    for tt in ((1,) if t == 3 else (2,)):
                        P.ds(f"ds_write_b128 v{V_RA}, {v(ACC+16*tt+4*i,4)} offset:{BUF + (tt-1)*4096 + i*1024}")
            if t == 3 and g != 7 and (g != 3 or X1): ck(g + 1)
        P.flags.add(("g2", g))
    P.stamp(8)
    for i in range(4):
        P.ds(f"ds_write_b128 v{V_RA}, {v(ACC+48+4*i,4)} offset:{BUF + 2*4096 + i*1024}")
    assert "rflag" in P.flags
    h_off(A, S_OFF)
    P.dall()
    A("s_barrier")
    R0 = 128
    for t in range(3):
        for i in range(4):
            P.ds(f"ds_read_b128 {v(R0+16*t+4*i,4)}, v{V_RA+1+t} offset:{BUF + t*4096 + i*1024}", ("r2", t))
    P.dneed(("r2", 0)); add2(A, R0, R0, ACC, 16)
    P.dneed(("r2", 2)); add2(A, R0+16, R0+16, R0+32, 16); add2(A, R0, R0, R0+16, 16)
    PK = R0 + 16
    for f in range(2):
        for q in range(4):
            r = 2*f + (q >> 1); i = 2*(q & 1)
            pk(A, PK + 4*f + q, R0 + 4*i + r, R0 + 4*(i+1) + r)
        unpoison(A, PK + 4*f)
        P.vm(f"buffer_store_dwordx4 {v(PK+4*f,4)}, v{V_L16}, {S4(S_W)}, s{S_OFF} offen offset:{1024*f} sc1", "hst")
    P.flags.add("hst")
    P.stamp(5)

G3STEPS = [(p, s_) for p in range(4) for s_ in range(7)]
NH = 14
def h_home(n):
    k = n % NH
    return ("v", 176 + 8*k) if k < 10 else ("a", 224 + 8*(k - 10))
QA = lambda k: 32 + 16*k
ACCQ = {0: [0, 1, 2, 3], 1: [4, 5, 6, 7], 2: [0, 1, 2, 3], 3: [4, 5, 6, 7]}
DUMP = {0: 0, 1: 12288, 2: 0, 3: 12288}
RX = 176
def h_loads(n):
    p, s_ = G3STEPS[n]
    k, b = h_home(n)
    return [(None, f"buffer_load_dwordx4 {R(k,b+4*a_,4)}, v{V_AO+2*p+a_}, {S4(S_W)}, s{S_HS+s_} offen {Cfg.hld}", ("h", n) if a_ else None) for a_ in range(2)]
def q_h(P, n):
    return [dict(kind="ld", emit=lambda t=t, tag=tag: P.vm(t, tag), pre=([("g3", n - NH)] if n >= NH else [])) for _, t, tag in h_loads(n)]
def q_hgate(P):
    spec = []
    for n in range(Cfg.hspec): spec += h_loads(n)
    return [q_gate(P, "h", f"buffer_load_dword v{V_P}, v{V_OUT+1}, {S4(S_W)}, 0 offen sc1", spec, ["hst", "rokh"], 6)]
RXB = [160, 184, 208]
def tpos(e): return 4*(e // 3) + e % 3
TAGS = [3, 7, 11, 15, 19, 21]
def px_ops(op, base, so):
    out = [f"buffer_{op}_dwordx4 {v(base+4*i,4)}, v{V_L16}, {S4(S_W)}, s{so} offen offset:{1024*i} sc1" for i in range(4)]
    out.append(f"buffer_{op}_dwordx4 {v(base+16,4)}, v{V_L16}, {S4(S_W)}, s{so+1} offen sc1")
    out.append(f"buffer_{op}_dwordx2 {v(base+20,2)}, v{V_L8}, {S4(S_W)}, s{so+1} offen offset:1024 sc1")
    return out
S_RXO = 36

def g3(P):
    A = P.A
    P.until("hok")
    P.g3 = True
    P.D = Cfg.D3
    vo = vorder()
    sd = Side(P)
    def dump(p):
        rec = Rec(); px_off(rec, S_OFF, p, True); rec(f"s_add_u32 s{S_OFF+1}, s{S_OFF}, 4096")
        sal = rec.l; assert len(sal) == 8
        for t in (1, 2, 3):
            for i in range(4):
                sd.add(lambda t=t, i=i: P.ds(f"ds_write_b128 v{V_RA}, {v(QA(ACCQ[p][t])+4*i,4)} offset:{DUMP[p] + (t-1)*4096 + i*1024}", ("dump", p)), 2)
                if p < 3:
                    if sal: sd.add(lambda t=sal.pop(0): A(t)); sd.add(lambda t=sal.pop(0): A(t))
                    elif Cfg.dwsp[p]: sd.wait(Cfg.dwsp[p])
        if p < 3: sd.wait(Cfg.barw)
    def bar(): sd.add(lambda: (P.dall(), A("s_nop 0" if "B" in Cfg.skip else "s_barrier")), 2)
    def lreads(p, T):
        for t in range(3):
            for i in range(4):
                sd.add(lambda t=t, i=i: P.ds(f"ds_read_b128 {v(T[t]+4*i,4)}, v{V_RA+1+t} offset:{DUMP[p] + t*4096 + i*1024}", ("r3", p, t)), 2)
    def reduce_send(p):
        own = QA(ACCQ[p][0]); T = [QA(k) for k in ACCQ[p][1:]]
        bar()
        lreads(p, T)
        sd.add(lambda: P.dneed(("r3", p, 0)))
        for e in range(16): sd.addf(own+e, own+e, T[0]+e)
        sd.add(lambda: P.dneed(("r3", p, 2)))
        for e in range(16): sd.addf(T[2]+e, T[1]+e, T[2]+e)
        st = px_ops("store", T[0], S_OFF)
        for k in range(6):
            for e in range(3*k, min(3*k+3, 16)): sd.addf(T[0]+tpos(e), own+e, T[2]+e)
            sd.add(lambda k=k: A(f"v_mov_b32 v{T[0]+TAGS[k]}, s{S_TOK}"))
            sd.add(lambda k=k: P.vm(st[k], ("pst", p)), 2)
    def rx(p):
        for t in px_ops("load", RXB[p], S_RXO + 2*p): sd.add(lambda t=t: P.vm(t, ("rx", p)), 2)
    def rxck(p):
        P.need(("rx", p))
        if Cfg.nock: return
        l = A.newlabel("rk"); b = RXB[p]
        A(f"s_mov_b32 s{S_T3}, {SPIN}")
        A.label(l)
        for k in TAGS: A(f"v_cmpx_eq_u32 s{S_TOK}, v{b+k}")
        A("s_cmp_eq_u64 exec, -1")
        A("s_mov_b64 exec, -1")
        A(f"s_cbranch_scc1 {l}o")
        for t in px_ops("load", b, S_RXO + 2*p): A(t)
        A(f"s_sub_u32 s{S_T3}, s{S_T3}, 1")
        A("s_waitcnt vmcnt(0)")
        A(f"s_cbranch_scc0 {l}")
        A.label(l + "o")
    def tsetup():
        px_off(A, S_RXO, 0, False)
        for k in range(1, 6): A(f"s_add_u32 s{S_RXO+k}, s{S_RXO}, {(k>>1)*4*PXW + (k&1)*4096}")
        A(f"s_and_b32 s{S_T0}, s{S_G3}, 1")
        A(f"s_lshl2_add_u32 s{S_T0}, s{S_T0}, s{S_KQ}")
        A(f"s_lshr_b32 s{S_T1}, s{S_W4}, 1")
        A(f"s_lshl1_add_u32 s{S_T0}, s{S_T0}, s{S_T1}")
        A(f"s_mul_i32 s{S_T0}, s{S_T0}, {16*7168}")
        A(f"s_lshr_b32 s{S_T1}, s{S_G3}, 1")
        A(f"s_lshl_b32 s{S_T1}, s{S_T1}, 8")
        A(f"s_add_u32 s{S_T0}, s{S_T0}, s{S_T1}")
        A(f"s_add_u32 s{S_XB4+3}, s{S_T0}, s{S_ETA}")
    def ck(n, s2):
        P.need(("h", n), s2 is None)
        k, hb = h_home(n)
        check(P, [(k, hb), (k, hb + 4)], [t for _, t, _ in h_loads(n)], sd=s2)
    def vmv(m, nb=False):
        if m not in P.VM: return
        if nb and not (("v", m) in P.idx and P.idx[("v", m)] < P.done): return
        P.issue(("v", m)); P.VM.pop(m)["emit"]()
    P.pump(Cfg.D3 - 2*Cfg.hspec, True)
    for m in sorted(P.VM): vmv(m, True)
    tsetup()
    ck(0, None)
    for n, (p, s_) in enumerate(G3STEPS):
        if (p, s_) == (3, Cfg.rx01): rx(0); rx(1)
        for b in range(2):
            m = vo.index((s_, b))
            vmv(m)
            P.until(("vmoved", m)); P.dwait_idx(P.didx[("vm", m)])
        k, hb = h_home(n)
        sd.drain_hi()
        for t in (1, 2, 3, 0):
            if s_ == 6 and t == 3:
                assert p == 3 or not sd.q, (p, len(sd.q))
                sd.drain(); dump(p)
                if p < 3: reduce_send(p)
            for i in range(4):
                mfma(A, v(QA(ACCQ[p][t])+4*i, 4), a(32*s_+16*(t & 1)+4*i, 4), R(k, hb+4*(t >> 1), 4), s_ == 0)
                if t == 2 and i == 3 and n < 27: ck(n + 1, sd)
                if t == 3 and i == 1 and n < 6:
                    for b in range(2): vmv(vo.index((s_ + 1, b)))
                    for m in sorted(P.VM): vmv(m, True)
                sd.gap(2 if s_ == 6 or p == 0 else Cfg.bud[p - 1])
        P.flags.add(("g3", n))
        if Cfg.fine >= 0 and 0 <= n - Cfg.fine < 8: P.stamp(8 + n - Cfg.fine, True)
        if n in (6, 13, 20, 27): P.stamp(9 + (6, 13, 20, 27).index(n))
    rx(2); bar()
    T = [QA(1), QA(2), QA(3)]; own = QA(4)
    lreads(3, T)
    sd.drain()
    rxck(0); rxck(1)
    for e in range(16): A(f"v_add_f32 v{QA(0)+e}, v{RXB[0]+tpos(e)}, v{RXB[1]+tpos(e)}")
    P.dneed(("r3", 3, 0)); add2(A, own, own, T[0], 16)
    P.dneed(("r3", 3, 2)); add2(A, T[1], T[1], T[2], 16); add2(A, own, own, T[1], 16)
    add2(A, own, own, QA(0), 16)
    rxck(2)
    P.stamp(13)
    for s_ in range(2):
        for e in range(8*s_, 8*s_+8): A(f"v_add_f32 v{own+e}, v{own+e}, v{RXB[2]+tpos(e)}")
        for q in range(4): pk(A, T[0]+4*s_+q, own+8*s_+2*q, own+8*s_+2*q+1)
        P.vm(f"buffer_store_dwordx4 {v(T[0]+4*s_,4)}, v{V_OUT}, {S4(S_O)}, s{S_XB4+3} offen offset:{64*s_} {Cfg.ost}")
    assert not P.Q, P.Q[0]

TO = (2, 3, 1, 0)
def TP(p): return [Cfg.to0, Cfg.to1, TO, TO][p]
def blocks3(): return [(p, s_, t) for p in range(4) for t in TP(p) for s_ in range(7)]
def frags3(): return [(p, s_, a_) for p in range(4) for a_ in (1, 0) for s_ in range(7)]
def fhome(f):
    p, s_, a_ = f
    k, b = h_home(7*p + s_)
    return k, b + 4*a_
def fload(f):
    p, s_, a_ = f
    k, b = fhome(f)
    return f"buffer_load_dwordx4 {R(k,b,4)}, v{V_AO+2*p+a_}, {S4(S_W)}, s{S_HS+s_} offen {Cfg.hld}"
def acc3(p, t): return QA(2*(p & 1) + (list(TP(p)).index(t) & 1))
SEND = 96
RX2 = [114, 132, 150, 176]
DSL = [36864, BUF, BUF + 4096]
def tsetup(A):
    px_off(A, S_RXO, 0, False)
    for k in range(1, 3): A(f"s_add_u32 s{S_RXO+k}, s{S_RXO}, {k*4*PXW}")
    A(f"s_and_b32 s{S_T0}, s{S_G3}, 1")
    A(f"s_lshl2_add_u32 s{S_T0}, s{S_T0}, s{S_KQ}")
    A(f"s_lshr_b32 s{S_T1}, s{S_W4}, 1")
    A(f"s_lshl1_add_u32 s{S_T0}, s{S_T0}, s{S_T1}")
    A(f"s_mul_i32 s{S_T0}, s{S_T0}, {16*7168}")
    A(f"s_lshr_b32 s{S_T1}, s{S_G3}, 1")
    A(f"s_lshl_b32 s{S_T1}, s{S_T1}, 8")
    A(f"s_add_u32 s{S_T0}, s{S_T0}, s{S_T1}")
    A(f"s_add_u32 s{S_XB4+3}, s{S_T0}, s{S_ETA}")
    for p in range(3):
        px_off(A, S_SO + p, p, True, TP(p)[3])
    A(f"v_lshrrev_b32 v{V_L4}, 1, v{V_L8}")
    A(f"v_add_u32 v{V_L4}, 4096, v{V_L4}")
S_SO = 39
V_L4 = 12
def cx_ops(op, base, so):
    out = [f"buffer_{op}_dwordx4 {v(base+4*i,4)}, v{V_L16}, {S4(S_W)}, s{so} offen offset:{1024*i} sc1" for i in range(4)]
    out.append(f"buffer_{op}_dword v{base+16}, v{V_L4}, {S4(S_W)}, s{so} offen sc1")
    return out
def csum(d, b, k): return f"v_add3_u32 v{d}, v{b+2*k}, v{b+2*k+1}, " + (f"v{d}" if k else f"s{S_TOK}")
def q_hgate2(P):
    F = frags3()
    spec = [(None, fload(f), ("hf", f)) for f in F[:Cfg.hsp]]
    def mid():
        tsetup(P.A)
        if Cfg.gmid:
            for m in sorted(P.VM):
                if ("v", m) in P.idx: P.VM.pop(m)["emit"]()
    return [q_gate(P, "h", f"buffer_load_dword v{V_P}, v{V_OUT+1}, {S4(S_W)}, 0 offen sc1", spec, ["hst", "rokh"], 6, None, mid)]
def q_g3rest(P):
    F = frags3(); Q = []
    lu = {(p, s_, t >> 1): j for j, (p, s_, t) in enumerate(blocks3())}
    for j, f in enumerate(F):
        if j < Cfg.hsp: continue
        if j == Cfg.hsp + Cfg.vpos: Q += [(-1, x) for x in vseq(P, 14, 99)]
        pv = (f[0] - 2, f[1], f[2])
        Q.append((lu.get(pv, -2) + 1, dict(kind="ld", emit=lambda f=f: P.vm(fload(f), ("hf", f)), pre=[("free", pv)] if f[0] >= 2 else [])))
    for r, b in enumerate([Cfg.rx0b, Cfg.rx1b, Cfg.rx2b] + ([Cfg.rxB] if Cfg.rxB else [])):
        for k, t in enumerate(cx_ops("load", RX2[r], S_RXO + min(r, 2))):
            Q.append((b + k, dict(kind="ld", emit=lambda t=t, r=r: P.vm(t, ("rx", r)), pre=[("blk", b)])))
    Q.sort(key=lambda x: x[0])
    return [x for _, x in Q]
class Side2:
    def __init__(self, P): self.q = deque(); self.hi = deque(); self.skip = 0; self.P = P; self.g = 0; self.lastv = -9; self.nv = P.nvm; self.vp = Cfg.vp
    def add(self, fn, cost=1, vm=False): self.q.append((cost, fn, vm))
    def wait(self, n): self.q.append((-n, None, False))
    def when(self, flag): self.q.append((0, flag, None))
    def note(self):
        if self.P.nvm != self.nv: self.nv = self.P.nvm; self.lastv = self.g
    def gap(self, budget):
        self.g += 1
        b0 = budget
        while budget > b0 - 2 and self.hi:
            self.hi.popleft()(); budget -= 1
        self.note()
        urgent = any(x[2] for x in list(self.q)[:4])
        if budget > 0 and not urgent and self.g - self.lastv >= self.vp:
            if self.P.step(True) is not None: budget -= 1
            self.note()
        if self.skip: self.skip -= 1; return
        while self.q:
            c, f, vm_ = self.q[0]
            if vm_ is None:
                if f not in self.P.flags: break
                self.q.popleft(); continue
            if c < 0:
                self.q.popleft(); self.skip = -c - 1; break
            if c > budget or (vm_ and self.g - self.lastv < vm_): break
            self.q.popleft(); f(); budget -= c
            self.note()
    def drain_hi(self):
        while self.hi: self.hi.popleft()()
    def drain(self, upto=None):
        self.drain_hi(); self.skip = 0
        while self.q and (upto is None or upto not in self.P.flags):
            c, f, vm_ = self.q.popleft()
            if vm_ is None: assert f in self.P.flags, f
            elif c >= 0: f()
def g3b(P):
    A = P.A
    P.until("hok")
    P.g3 = True
    P.D = Cfg.D3
    vo = vorder(); B = blocks3(); F = frags3()
    sd = Side2(P)
    fu = {}; lu = {}
    for j, (p, s_, t) in enumerate(B):
        fu.setdefault((p, s_, t >> 1), j); lu[(p, s_, t >> 1)] = j
    G = []
    for k in range(0, 56, 7):
        for n in (Cfg.ck0 if k == 0 else Cfg.ck1):
            G.append(F[k:k+n]); k += n
    assert sum(map(len, G)) == 56
    gat = {}
    for g in G: gat.setdefault(max(fu[g[0]] - Cfg.cka, -1), []).append(g)
    def ck(g, s2):
        for f in g: P.issue(("hf", f))
        P.need(("hf", g[-1]), False)
        check(P, [fhome(f) for f in g], [fload(f) for f in g], sd=s2)
    def dump(p, k):
        T4 = TP(p); t = T4[k]; X = acc3(p, t)
        if Cfg.dw64:
            for i in range(8):
                sd.add(lambda i=i: P.ds(f"ds_write_b64 v{V_RA}, {v(X+2*i,2)} offset:{DSL[k] + (i>>1)*1024 + (i&1)*8}", ("dump", p, k)))
                sd.wait(Cfg.dw64 if i < 7 else Cfg.barw)
        else:
          for i in range(4):
            sd.add(lambda i=i: P.ds(f"ds_write_b128 v{V_RA}, {v(X+4*i,4)} offset:{DSL[k] + i*1024}", ("dump", p, k)))
            sd.wait(Cfg.dwp if i < 3 else Cfg.barw)
        sd.add(lambda: (P.dall(), A("s_nop 0" if "B" in Cfg.skip else "s_barrier")), 2)
        src = [T4[0] ^ T4[2], T4[1] ^ T4[3], T4[2] ^ T4[3]][k]
        for i in range(4):
            sd.add(lambda i=i: P.ds(f"ds_read_b128 {v(X+4*i,4)}, v{V_RA+src} offset:{DSL[k] + i*1024}", ("r3", p, k)))
            sd.wait(1)
        sd.add(lambda: P.flags.add(("rd3", p, k)), 0)
        if k < 2 or p == 3: return
        own = acc3(p, T4[3])
        sd.when(("own", p))
        sd.add(lambda: P.dneed(("r3", p, 2)))
        st = cx_ops("store", SEND, S_SO + p)
        for c in range(4):
            for e in range(4*c, 4*c+4): sd.add(lambda e=e: A(f"v_add_f32 v{SEND+e}, v{own+e}, v{X+e}"))
            sd.add(lambda c=c: P.vm(st[c], ("pst", p)), 1, Cfg.vps[p])
            if Cfg.csl == 0 or c == 3:
                for k2 in range(0 if Cfg.csl else 2*c, 2*c+2): sd.add(lambda k2=k2: A(csum(SEND+16, SEND, k2)))
        sd.add(lambda: P.vm(st[4], ("pst", p)), 1, Cfg.vps[p])
        sd.add(lambda: P.flags.add(("sent", p)), 0)
    def rxtest(b):
        for k in range(8): A(csum(b+17, b, k))
        A(f"v_cmp_ne_u32 vcc, v{b+17}, v{b+16}")
    def rxck(r):
        P.need(("rx", r), False)
        if Cfg.nock: return
        l = A.newlabel("rk"); b = RX2[r]
        A(f"s_mov_b32 s{S_T3}, {SPIN}")
        A.label(l)
        rxtest(b)
        A(f"s_cbranch_vccz {l}o")
        for t in cx_ops("load", b, S_RXO + min(r, 2)): A(t)
        A(f"s_sub_u32 s{S_T3}, s{S_T3}, 1")
        A("s_waitcnt vmcnt(0)")
        A(f"s_cbranch_scc0 {l}")
        A.label(l + "o")
    def vmv(m, nb=False):
        if m not in P.VM: return
        if nb and not (("v", m) in P.idx and P.idx[("v", m)] < P.done): return
        P.issue(("v", m)); P.VM.pop(m)["emit"]()
    P.pump(Cfg.burst, True)
    for m in sorted(P.VM): vmv(m, True)
    for g in gat.get(-1, []): ck(g, None)
    late = 0
    for j, (p, s_, t) in enumerate(B):
        P.flags.add(("blk", j))
        k = list(TP(p)).index(t)
        if p == 0:
            m = vo.index((s_, t & 1))
            vmv(m)
            P.until(("vmoved", m)); P.dwait_idx(P.didx[("vm", m)])
        if (p, s_, t >> 1) in [g[0] for g in G] and fu[(p, s_, t >> 1)] == j: sd.drain_hi()
        if s_ == 0:
            if k: dump(p, k - 1)
            elif p: P.flags.add(("own", p - 1))
            if k >= 2:
                if ("rd3", p, k - 2) not in P.flags: late += 1
                sd.drain(("rd3", p, k - 2)); P.dneed(("r3", p, k - 2))
            elif p >= 2: assert ("sent", p - 2) in P.flags
        kk, hb = fhome((p, s_, t >> 1))
        for i in range(4):
            mfma(A, v(acc3(p, t)+4*i, 4), a(32*s_+16*(t & 1)+4*i, 4), R(kk, hb, 4), s_ == 0 and k < 2)
            if i == 0:
                for g in gat.get(j, []): ck(g, sd)
            if i == 1 and p == 0:
                for jj in (j + 2, j + 3):
                    if B[jj][0] == 0: vmv(vo.index((B[jj][1], B[jj][2] & 1)))
                for m in sorted(P.VM): vmv(m, True)
            if i == 3 and lu[(p, s_, t >> 1)] == j: P.flags.add(("free", (p, s_, t >> 1)))
            sd.gap(Cfg.b3[p] if k == 0 else 2)
        if j % 4 == 3:
            n = j // 4
            if Cfg.fine >= 0 and 0 <= n - Cfg.fine < 8: P.stamp(8 + n - Cfg.fine, True)
            if n in (6, 13, 20, 27): P.stamp(9 + (6, 13, 20, 27).index(n))
    assert not late
    for j in range(112, 130): P.flags.add(("blk", j))
    while P.Q: assert P.step() is not None
    sd.drain()
    own = acc3(3, 0); X = acc3(3, TO[2]); TQ = QA(0)
    rxck(0)
    if Cfg.tst: P.need(("rx", 1), False); P.stamp(8)
    rxck(1)
    if Cfg.tst: P.stamp(14)
    add2(A, TQ, RX2[0], RX2[1], 16)
    P.dneed(("r3", 3, 2))
    add2(A, own, own, X, 16)
    add2(A, own, own, TQ, 16)
    def fin(b):
        for s_ in range(2):
            add2(A, own+8*s_, own+8*s_, b+8*s_, 8)
            for q in range(4): pk(A, TQ+4*s_+q, own+8*s_+2*q, own+8*s_+2*q+1)
            A(f"buffer_store_dwordx4 {v(TQ+4*s_,4)}, v{V_OUT}, {S4(S_O)}, s{S_XB4+3} offen offset:{64*s_} {Cfg.ost}")
    if not Cfg.rxB:
        if Cfg.tst: P.need(("rx", 2), False); P.stamp(15)
        rxck(2)
        P.stamp(13)
        fin(RX2[2])
        return
    l = A.newlabel("rz")
    A(f"s_mov_b32 s{S_T3}, {SPIN}")
    A.label(l)
    A("s_waitcnt vmcnt(5)")
    rxtest(RX2[2])
    A(f"s_cbranch_vccz {l}a")
    for t in cx_ops("load", RX2[2], S_RXO + 2): A(t)
    A("s_waitcnt vmcnt(5)")
    rxtest(RX2[3])
    A(f"s_cbranch_vccz {l}b")
    for t in cx_ops("load", RX2[3], S_RXO + 2): A(t)
    A(f"s_sub_u32 s{S_T3}, s{S_T3}, 1")
    A(f"s_cbranch_scc0 {l}")
    A.label(l + "b")
    P.stamp(13)
    fin(RX2[3])
    A("s_branch kfin")
    A.label(l + "a")
    P.stamp(13)
    fin(RX2[2])

V_XO = 64
def xf_home(n):
    k, b = xr_home(n >> 2)
    return k, b + 4*(n & 3)
def xf_load(n):
    du, b = Cfg.qord[g2order()[n & 7]]
    k, hb = xf_home(n)
    return f"buffer_load_dwordx4 {R(k,hb,4)}, v{V_XO+TO[n>>3]}, {S4(S_W)}, s{S_XJ+du} offen offset:{2048*b} {Cfg.hld}"
def q_xr2(P):
    A = P.A
    def setup():
        xprobe_setup(P)
        for t in TO: A(f"v_add_u32 v{V_XO+t}, s{S_XB4+t}, v{V_L16}")
        P.D = Cfg.D2
    def mid():
        g2setup(P)
        for s_ in range(7): vo_calc(A, S_VO[s_], s_)
        P.flags.add("vo")
        for it in P.XM: it["emit"]()
    spec = [(None, xf_load(n), ("xf", n)) for n in range(Cfg.xsp)]
    P.XM = vflush(P)
    items = [q_gate(P, "x0", f"buffer_load_dword v{V_P}, v{V_XP}, {S4(S_W)}, 0 offen sc1", spec, ["rokx", "rflag", ("dq", 7)], 14, setup, mid)]
    for n in range(Cfg.xsp, 32): items.append(dict(kind="ld", emit=lambda n=n: P.vm(xf_load(n), ("xf", n))))
    return items
def g2b(P):
    A = P.A
    P.until("x0ok")
    sd = Side2(P); sd.vp = Cfg.vp2
    od = g2order()
    acc = lambda k: 32 + 16*(k & 1)
    G = [list(range(n, n + Cfg.ckg2)) for n in range(0, 32, Cfg.ckg2)]
    gat = {}
    for g in G: gat.setdefault(max(4*g[0] - Cfg.cka2, -1), []).append(g)
    def ck(g, s2):
        for n in g: P.issue(("xf", n))
        P.need(("xf", g[-1]), False)
        check(P, [xf_home(n) for n in g], [xf_load(n) for n in g], sd=s2)
    def dump(k):
        X = acc(k)
        for i in range(4):
            sd.add(lambda i=i: P.ds(f"ds_write_b128 v{V_RA}, {v(X+4*i,4)} offset:{BUF + 4096*k + i*1024}"))
            sd.wait(Cfg.dwp2 if i < 3 else Cfg.barw)
        sd.add(lambda: (P.dall(), A("s_barrier")), 2)
        src = [TO[0] ^ TO[2], TO[1], TO[2]][k]
        for i in range(4):
            sd.add(lambda i=i: P.ds(f"ds_read_b128 {v(X+4*i,4)}, v{V_RA+src} offset:{BUF + 4096*k + i*1024}", ("r2", k)))
            sd.wait(1)
        sd.add(lambda: P.flags.add(("rd2", k)), 0)
    P.pump(Cfg.xburst, True)
    for g in gat.get(-1, []): ck(g, None)
    for n in range(32):
        k, j = n >> 3, n & 7
        if n % Cfg.ckg2 == 0: sd.drain_hi()
        if j == 0:
            if k: dump(k - 1)
            if k >= 2:
                assert ("rd2", k - 2) in P.flags
                P.dneed(("r2", k - 2))
            if k == 3:
                rec = Rec(); h_off(rec, S_OFF)
                for x in rec.l: sd.add(lambda x=x: A(x))
        kk, hb = xf_home(n)
        for i in range(4):
            mfma(A, v(acc(k)+4*i, 4), v(WQ+16*od[j]+4*i, 4), R(kk, hb, 4), j == 0 and k < 2)
            for g in gat.get(4*n + i, []): ck(g, sd)
            if n < 31 or i < 3: sd.gap(2)
        if n % 4 == 3: P.flags.add(("g2", n >> 2))
    P.stamp(8)
    assert not sd.q and "rflag" in P.flags
    P.dneed(("r2", 2))
    A("s_nop 3")
    R0 = acc(3); PK = 128
    add2(A, R0, R0, acc(2), 16)
    for f in range(2):
        for q in range(4):
            r = 2*f + (q >> 1); i = 2*(q & 1)
            pk(A, PK + 4*f + q, R0 + 4*i + r, R0 + 4*(i+1) + r)
        unpoison(A, PK + 4*f)
        P.vm(f"buffer_store_dwordx4 {v(PK+4*f,4)}, v{V_L16}, {S4(S_W)}, s{S_OFF} offen offset:{1024*f} sc1", "hst")
    P.flags.add("hst")
    P.stamp(5)

def prog_C(A):
    P = Prog(A); P.vn = 0; P.vmn = 0; P.vlast = -9
    A.label("cls_C" + SFX[0])
    x8, slot = S_T2, S_T3
    T = WQ
    A(f"s_lshl2_add_u32 s{S_T0}, s{slot}, s{S_W4}")
    sm = Cfg.smap
    nx = 64 >> sm
    A(f"v_lshrrev_b32 v{T}, {1+sm}, v0")
    A(f"v_lshlrev_b32 v{T}, 11, v{T}")
    A(f"v_and_b32 v{T+1}, {(2 << sm) - 1}, v0")
    A(f"v_lshl_add_u32 v{T}, v{T+1}, 7, v{T}")
    A(f"v_lshlrev_b32 v{T+1}, 7, v0")
    A(f"s_lshl_b32 s{S_OFF}, s{S_T0}, 13")
    if sm:
        A(f"s_and_b32 s{S_T1}, s{x8}, {(1 << sm) - 1}")
        A(f"s_lshl_b32 s{S_T1}, s{S_T1}, {19 - sm}")
        A(f"s_add_u32 s{S_OFF}, s{S_OFF}, s{S_T1}")
    A(f"s_sub_u32 s{S_T1}, s{S_T0}, {nx}")
    A(f"s_lshl_b32 s{S_OFF2}, s{S_T1}, {16 - sm}")
    A(f"s_lshr_b32 s{S_T1}, s{x8}, {sm}")
    A(f"s_lshl_b32 s{S_T1}, s{S_T1}, {8 + sm}")
    A(f"s_add_u32 s{S_OFF2}, s{S_OFF2}, s{S_T1}")
    A(f"s_lshr_b32 s{S_QB}, s{slot}, 2")
    A(f"s_mul_i32 s{S_CB}, s{x8}, 7")
    A(f"s_add_u32 s{S_CB}, s{S_CB}, s{S_QB}")
    A(f"s_add_u32 s{S_QB}, s{S_MB}, s{S_QB}")
    def xj(du):
        if du: A(f"s_add_u32 s{S_QB}, s{S_QB}, 1")
        A(f"s_and_b32 s{S_XJ+du}, s{S_QB}, 3")
        A(f"s_and_b32 s{S_T1}, s{S_QB}, 2")
        A(f"s_add_u32 s{S_XJ+du}, s{S_XJ+du}, s{S_T1}")
        A(f"s_lshl_b32 s{S_XJ+du}, s{S_XJ+du}, 10")
    xj(0)
    c, g = T + 2, T + 3
    A(f"v_and_b32 v{c}, 15, v0")
    A(f"v_lshrrev_b32 v{g}, 4, v0")
    A(f"v_mul_u32_u24 v{V_QO}, {4*14336}, v{g}")
    A(f"v_lshl_add_u32 v{V_QO}, v{c}, 4, v{V_QO}")
    A(f"s_mul_i32 s{S_KQ}, s{S_W4}, {256*14336}")
    A(f"s_lshl_b32 s{S_T1}, s{S_CB}, 8")
    A(f"s_add_u32 s{S_KQ}, s{S_KQ}, s{S_T1}")
    A(f"v_add_u32 v{V_QO}, s{S_KQ}, v{V_QO}")
    A(f"v_lshlrev_b32 v{c}, 3, v{c}")
    A("s_waitcnt lgkmcnt(0)")
    if Cfg.touch:
        A(f"s_cmp_ge_u32 s{S_T0}, {nx}")
        A(f"s_cbranch_scc1 tchU{SFX[0]}")
        srd(A, S_X, 8, 9, 256 * 1024 * 2)
        A(f"buffer_load_dword v{V_CHK+2}, v{T+1}, {S4(S_X)}, s{S_OFF} offen")
        A(f"s_branch tchE{SFX[0]}")
        A.label("tchU" + SFX[0])
        A(f"s_cmp_ge_u32 s{S_T0}, 96")
        A(f"s_cbranch_scc1 tchT{SFX[0]}")
        srd(A, S_U, 16, 17, 1024 * 1024 * 2)
        A(f"buffer_load_dword v{V_CHK+2}, v{T}, {S4(S_U)}, s{S_OFF2} offen")
        if sm == 2:
            A(f"s_add_u32 s{S_OFF2}, s{S_OFF2}, {80 << 14}")
            A(f"buffer_load_dword v{V_CHK+2}, v{T}, {S4(S_U)}, s{S_OFF2} offen")
        A(f"s_branch tchE{SFX[0]}")
        A.label("tchT" + SFX[0])
    A(f"s_lshl2_add_u32 s{S_T1}, s2, s{S_W4}")
    A(f"s_cmp_lg_u32 s{S_T1}, {192*4}")
    A(f"s_cbranch_scc1 tchE{SFX[0]}")
    srd(A, S_D, 22, 23, 256)
    A(f"v_mov_b32 v{V_P}, s{S_TOK}")
    A(f"v_mov_b32 v{V_P+1}, s{S_TOK+1}")
    A("s_mov_b64 exec, 1")
    A(f"buffer_store_dwordx2 v[{V_P}:{V_P+1}], off, {S4(S_D)}, 0 sc1")
    A("s_mov_b64 exec, -1")
    A.label("tchE" + SFX[0])
    srd(A, S_S, 12, 13, 3584 * 2)
    srd(A, S_Z, 14, 15, 3584 * 2)
    srd(A, S_Q, 10, 11, 1024 * 3584 * 4)
    A(f"s_lshl_b32 s{S_T0}, s{S_CB}, 7")
    P.vm(f"buffer_load_dwordx2 {v(WQ+96,2)}, v{c}, {S4(S_S)}, s{S_T0} offen")
    P.vm(f"buffer_load_dwordx2 {v(WQ+100,2)}, v{c}, {S4(S_Z)}, s{S_T0} offen", "sz")
    Q = P.Q
    Q += q_qw(P, 0)
    P.pump(6)
    srd(A, S_D, 22, 23, 256)
    srd(A, S_W, 24, 25, 32 << 20)
    srd(A, S_V, 18, 19, 3584 * 3584 * 2)
    srd(A, S_O, 20, 21, 256 * 3584 * 2)
    if Cfg.tlb:
        A(f"v_lshlrev_b32 v{T}, {Cfg.tlb}, v0")
        A(f"s_mov_b64 exec, {(1 << min(64, (26 << 21) >> Cfg.tlb >> 1)) - 1 if Cfg.tlb > 19 else -1}")
        P.vm(f"buffer_load_dword v{V_CHK+2}, v{T}, {S4(S_V)}, 0 offen")
        P.vm(f"buffer_load_dword v{V_CHK+2}, v{T}, {S4(S_W)}, 0 offen")
        A(f"v_mul_u32_u24 v{T}, {7 << 16}, v0")
        A("s_mov_b64 exec, 15")
        P.vm(f"buffer_load_dword v{V_CHK+2}, v{T}, {S4(S_O)}, 0 offen")
        A("s_mov_b64 exec, -1")
    stamp_init2(A)
    A("s_setreg_imm32_b32 hwreg(HW_REG_MODE, 4, 2), 3")
    for du in range(1, 4): xj(du)
    A(f"s_lshr_b32 s{S_T0}, s{S_W4}, 1")
    A(f"s_lshl1_add_u32 s{S_T0}, s{S_CB}, s{S_T0}")
    A(f"s_and_b32 s{S_T1}, s{S_W4}, 1")
    A(f"s_lshl2_add_u32 s{S_T0}, s{S_T0}, s{S_T1}")
    A(f"s_lshl_b32 s{S_T0}, s{S_T0}, 13")
    A(f"s_add_u32 s{S_PKB}, s{S_T0}, {PK_OFF}")
    A(f"s_lshr_b32 s{S_KQ}, s{x8}, 1")
    A(f"s_and_b32 s{S_T0}, s{x8}, 1")
    A(f"s_mul_i32 s{S_T0}, s{S_T0}, 28")
    A(f"s_add_u32 s{S_G3}, s{S_T0}, s{slot}")
    A(f"s_xor_b32 s{S_ETA}, s{slot}, s{S_W4}")
    A(f"s_and_b32 s{S_ETA}, s{S_ETA}, 1")
    A(f"s_lshl_b32 s{S_ETA}, s{S_ETA}, 7")
    A(f"s_lshl2_add_u32 s{S_T0}, s{S_KQ}, s{S_W4}")
    A(f"s_mul_i32 s{S_T0}, s{S_T0}, 7")
    A(f"s_lshr_b32 s{S_T1}, s{slot}, 2")
    if Cfg.vrow:
        A(f"s_lshr_b32 s{S_HS}, s{S_ETA}, 5")
        A(f"s_add_u32 s{S_T1}, s{S_T1}, s{S_HS}")
        A(f"s_sub_u32 s{S_HS}, s{S_T1}, 7")
        A(f"s_cselect_b32 s{S_T1}, s{S_T1}, s{S_HS}")
    for s_ in range(7):
        if s_:
            A(f"s_add_u32 s{S_T1}, s{S_T1}, 1")
            A(f"s_cmp_ge_u32 s{S_T1}, 7")
            A(f"s_cselect_b32 s{S_T1}, 0, s{S_T1}")
        A(f"s_add_u32 s{S_HS+s_}, s{S_T0}, s{S_T1}")
        A(f"s_lshl_b32 s{S_HS+s_}, s{S_HS+s_}, 10")
    for t in range(4):
        A(f"s_xor_b32 s{S_T0}, s{S_W4}, {t}")
        A(f"s_lshl2_add_u32 s{S_T0}, s{S_MB}, s{S_T0}")
        A(f"s_lshl2_add_u32 s{S_T0}, s{S_T0}, s{S_W4}")
        A(f"s_lshl_b32 s{S_XB4+t}, s{S_T0}, 13")
    dma_chunk(A, T, T+1, T+2)
    A(f"v_and_b32 v{T}, 3, v{T}")
    A(f"v_lshrrev_b32 v{T+2}, 5, v0")
    A(f"v_lshl_add_u32 v{T}, v{T+2}, 4, v{T}")
    A(f"v_mul_u32_u24 v{T}, 7168, v{T}")
    A(f"v_add_u32 v{T}, v{T}, v{T+1}")
    A(f"s_lshr_b32 s{S_T0}, s{S_G3}, 1")
    A(f"s_lshl_b32 s{S_T0}, s{S_T0}, 8")
    A(f"v_add_u32 v{V_VD}, s{S_T0}, v{T}")
    for q in range(1, 4): A(f"v_add_u32 v{V_VD+q}, {(32*(q&1)+4*(q>>1))*7168 - q*1024}, v{V_VD}")
    tr_addrs(A, T, True)
    A(f"v_lshlrev_b32 v{V_L8}, 3, v0")
    for q in range(4): A(f"v_accvgpr_write_b32 a{PZ+q}, -1")
    P.flags.add("vset")
    rp, rc = q_rpoll(P, "x")
    hp, hc = q_rpoll(P, "h")
    qn = 1; pn = 0
    SA = SB = None
    for ch in Cfg.seq1:
        if ch == "(": SA = []; SB = []; continue
        if ch == ")":
            na, nb_ = len(SA), len(SB); ia = ib = 0
            while ia < na or ib < nb_:
                if ib >= nb_ or (ia < na and ia * nb_ <= ib * na): Q.append(SA[ia]); ia += 1
                else: Q.append(SB[ib]); ib += 1
            SA = SB = None; continue
        D = Q if SA is None else SB if ch in "Vf" else SA
        if ch == "q": D += q_qw(P, qn); qn += 1
        elif ch == "t": D += q_tok(P)
        elif ch == "h": D += q_poison(P)
        elif ch == "T": D += q_tokchk(P, True)
        elif ch == "F": D += q_rflag(P)
        elif ch == "r": D += hp
        elif ch == "c": D += hc
        elif ch == "R": D += rp
        elif ch == "C": D += rc
        elif ch == "V": D += vseq(P, 1, Cfg.vml)
        elif ch == "W": D += vseq(P, 1, NRV - 1)
        elif ch == "X": D += q_xr2(P) if Cfg.g2v == 2 else q_xr1(P)
        elif ch == "P": D += q_xtouch(P)
        elif ch == "f": D += vflush(P)
        elif ch in "12": D += q_xr(P, int(ch) - 1)
        elif ch == "H": D.append(dict(kind="act", emit=lambda: None, pre=["hst"]))
        elif ch == "G": D += q_hgate2(P) if Cfg.g3v == 2 else q_hgate(P)
        else: assert 0, ch
    assert qn == 8
    if Cfg.g3v == 2: Q += q_g3rest(P)
    else:
      for n in range(Cfg.hspec, 28):
        if n == Cfg.hspec + Cfg.vpos: Q += vseq(P, 14, NRV - 1)
        Q += q_h(P, n)
    P.VM = {m: q_vmove(P, m)[0] for m in range(P.vmn, 14)}
    lut_build(P)
    for p in range(8):
        dequant(P, p)
        if p == 3: P.stamp(15)
    P.stamp(3)
    (g2b if Cfg.g2v == 2 else g2)(P)
    (g3b if Cfg.g3v == 2 else g3)(P)

def build():
    COLD.clear(); WARM.clear()
    A = Asm()
    A.raw(f".globl {NAME}\n.p2align 8\n.type {NAME},@function\n{NAME}:")
    prologue(A)
    B = Asm(); B.uid = 1000
    prog_S(B)
    prog_C(A)
    A.label("kfin")
    stamp_flush(A)
    A("s_endpgm")
    A.raw(B.text())
    if Cfg.seq2:
        B2 = Asm(); B2.uid = 2000
        SFX[0] = "b"; Cfg.seq1 = Cfg.seq2
        if Cfg.vlag2 >= 0: Cfg.vlag = Cfg.vlag2
        prog_C(B2)
        B2("s_branch kfin")
        A.raw(B2.text())
    for c in WARM: A.raw(c)
    A.label("kend")
    A("s_endpgm")
    for c in COLD: A.raw(c)
    out = HEADER + "; @launch grid=(256,1,1) block=(256,1,1) lds=163840\n"
    out += '.amdgcn_target "amdgcn-amd-amdhsa--gfx950"\n.text\n'
    out += A.text()
    out += '.section .rodata,"a"\n.p2align 6\n' + kernel_desc(NAME)
    return out

if __name__ == "__main__":
    for kv in sys.argv[2:]:
        k, val = kv.split("=")
        setattr(Cfg, k, json.loads(val) if val[:1] in "0123456789[-" and val else val.replace("+", " "))
    open(sys.argv[1], "w").write(build())
```
